```python
import torch

def _softmax(x, axis=-1):
    return torch.softmax(x, dim=axis)
def _gelu(x):
    return torch.nn.functional.gelu(x, approximate="tanh")
def _silu(x):
    return torch.nn.functional.silu(x)
def _sigmoid(x):
    return torch.sigmoid(x)
def _layernorm(x, axis=-1, eps=1e-5):
    m = x.mean(dim=axis, keepdim=True)
    v = x.var(dim=axis, keepdim=True, unbiased=False)
    return (x - m) / torch.sqrt(v + eps)
def _scatter_add(tgt, idx, src, axis=0):
    return tgt.clone().index_add_(axis, idx, src)
def _segment_sum(src, seg, n):
    out = torch.zeros((n,) + src.shape[1:], dtype=src.dtype)
    return out.index_add_(0, seg, src)
def _pad(x, pw):
    flat = tuple(v for pair in reversed(pw) for v in pair)
    return torch.nn.functional.pad(x, flat)

kernel_name = 'recurrent_scan__compressed_kv_cla__geglu_ffn__decode'

def setup_inputs():

    _w = (lambda a: (lambda t: t.to(torch.bfloat16) if t.is_floating_point() else t)(torch.as_tensor(a)))
    def _A_setup():
        B, H, Sq, Sk, D, M = 1, 32, 1, 8192, 128, 640
        Dc = 4 * D
        return {
            "x": _w((lambda *s: torch.randn(*s, dtype=torch.bfloat16) * 0.05)(B, Sq, M)),
            "c_kv": _w((lambda *s: torch.randn(*s, dtype=torch.bfloat16) * 0.8)(B, Sk, Dc)),
            "w_q": _w((lambda *s: torch.randn(*s, dtype=torch.bfloat16) * 1.6)(M, H, D) * (M ** -0.5)),
            "w_uk": _w((lambda *s: torch.randn(*s, dtype=torch.bfloat16) * 1.6)(Dc, H, D) * (Dc ** -0.5)),
            "w_uv": _w((lambda *s: torch.randn(*s, dtype=torch.bfloat16) * 0.8)(Dc, H, D) * (Dc ** -0.5)),
            "w_o": _w((lambda *s: torch.randn(*s, dtype=torch.bfloat16) * 0.8)(H, D, M) * ((H * D) ** -0.5)),
        }
    _A_in = _A_setup()

    def _B_setup():
        B, S, D, F = 1, 1, 640, 1728
        return {
            "x": _w((lambda *s: torch.randn(*s, dtype=torch.bfloat16) * 0.05)(B, S, D)),
            "w_gate": _w((lambda *s: torch.randn(*s, dtype=torch.bfloat16) * 0.2)(D, F)),
            "w_up": _w((lambda *s: torch.randn(*s, dtype=torch.bfloat16) * 0.2)(D, F)),
            "w_down": _w((lambda *s: torch.randn(*s, dtype=torch.bfloat16) * 0.2)(F, D)),
        }
    _B_in = _B_setup()

    return {
        "A_x": _A_in["x"],
        "A_c_kv": _A_in["c_kv"],
        "A_w_q": _A_in["w_q"],
        "A_w_uk": _A_in["w_uk"],
        "A_w_uv": _A_in["w_uv"],
        "A_w_o": _A_in["w_o"],
        "B_x": _B_in["x"],
        "B_w_gate": _B_in["w_gate"],
        "B_w_up": _B_in["w_up"],
        "B_w_down": _B_in["w_down"],
    }

def reference(A_x, A_c_kv, A_w_q, A_w_uk, A_w_uv, A_w_o, B_x, B_w_gate, B_w_up, B_w_down):
    def _A_ref(x, c_kv, w_q, w_uk, w_uv, w_o):
        B, Sq, M = x.shape[0], x.shape[1], x.shape[2]
        Sk = c_kv.shape[1]
        H, D = w_q.shape[1], w_q.shape[2]
        q = torch.einsum("bqm,mhd->bhqd", x, w_q)
        k = torch.einsum("bkc,chd->bhkd", c_kv, w_uk)
        v = torch.einsum("bkc,chd->bhkd", c_kv, w_uv)
        scores = torch.einsum("bhqd,bhkd->bhqk", q, k) * (D ** -0.5)
        off = Sk - Sq
        qi = torch.arange(Sq)[:, None]
        kj = torch.arange(Sk)[None, :]
        cmask = kj <= (qi + off)
        scores = torch.where(cmask[None, None], scores, -1e9)
        p = _softmax(scores, axis=-1)
        ctx = torch.einsum("bhqk,bhkd->bhqd", p, v)
        return torch.einsum("bhqd,hdm->bqm", ctx, w_o)

    def _B_ref(x, w_gate, w_up, w_down):
        return (_gelu(x @ w_gate) * (x @ w_up)) @ w_down

    x = A_x
    xn = _layernorm(x, axis=-1)
    s = _A_ref(xn, A_c_kv, A_w_q, A_w_uk, A_w_uv, A_w_o)
    g = _silu(_B_ref(xn, B_w_gate, B_w_up, B_w_down))
    return x + s * g
```

```python
import re
TRANS = ("v_exp_f32", "v_log_f32", "v_rcp_f32", "v_rsq_f32", "v_sqrt_f32")
def regs(tok):
    tok = tok.strip()
    tok = tok.lstrip("-").replace("abs(", "").replace(")", "").strip("|")
    m = re.fullmatch(r"([vsa])(\d+)", tok)
    if m: return [(m.group(1), int(m.group(2)))]
    m = re.fullmatch(r"([vsa])\[(\d+):(\d+)\]", tok)
    if m: return [(m.group(1), i) for i in range(int(m.group(2)), int(m.group(3)) + 1)]
    if tok == "vcc": return [("s", "vcc")]
    if tok == "m0": return [("s", "m0")]
    if tok == "exec": return [("s", "exec")]
    return []
class Ins:
    def __init__(self, text):
        self.text = text
        t = text.split(";")[0].strip()
        self.label = t.endswith(":") or t.startswith(".") or t == ""
        self.op = ""; self.w = []; self.r = []; self.srcc = []; self.ab = []; self.data = []
        if self.label: return
        parts = t.split(None, 1); self.op = op = parts[0]
        rest = parts[1] if len(parts) > 1 else ""
        ops = [o.strip() for o in re.split(r",(?![^\[]*\])", rest)]
        last = ops[-1].split() if ops and ops[-1] else []
        self.mods = " ".join(last[1:])
        if last: ops[-1] = last[0]
        R = [regs(o) for o in ops]
        flat = lambda L: [x for l in L for x in l]
        self.valu = op.startswith("v_")
        self.mfma = op.startswith("v_mfma") or op.startswith("v_smfmac")
        self.dot = op.startswith("v_dot")
        self.trans = op in TRANS
        self.dpp = "_dpp" in op
        self.perml = op.startswith("v_permlane")
        self.rdlane = op.startswith("v_readlane") or op.startswith("v_readfirstlane")
        self.vmem = op.startswith("buffer_") or op.startswith("global_")
        self.ds = op.startswith("ds_")
        self.salu = op.startswith("s_")
        self.ldsdma = self.vmem and " lds" in (" " + self.mods)
        if self.mfma:
            self.w = R[0]; self.ab = R[1] + R[2]
            self.srcc = R[0] if op.startswith("v_smfmac") else R[3]
            self.r = self.ab + self.srcc + (R[3] if op.startswith("v_smfmac") else [])
        elif self.perml:
            self.w = R[0] + R[1]; self.r = R[0] + R[1]
        elif self.valu:
            self.w = R[0]; self.r = flat(R[1:])
            if op.startswith("v_cmpx"): self.w = self.w + [("s", "exec")]
            if op.startswith(("v_fmac", "v_dot2c", "v_writelane")) or self.dpp: self.r = self.r + R[0]
            if op.startswith("v_cndmask") and (len(ops) == 3 or self.dpp): self.r = self.r + [("s", "vcc")]
            self.dppsrc = R[1] if self.dpp else []
        elif self.vmem:
            if "load" in op and not self.ldsdma: self.w = R[0]; self.r = flat(R[1:])
            elif "store" in op:
                self.r = flat(R)
                d = R[0] if op.startswith("buffer_") else R[1]
                if len(d) >= 3: self.data = d
            else: self.r = flat(R)
            if self.ldsdma: self.r = self.r + [("s", "m0")]
        elif self.ds:
            if "read" in op or "permute" in op: self.w = R[0]; self.r = flat(R[1:])
            else: self.r = flat(R)
        elif self.salu:
            if op.startswith(("s_cmp", "s_cbranch", "s_branch", "s_waitcnt", "s_nop", "s_barrier", "s_sleep", "s_endpgm", "s_setprio")):
                self.r = flat(R)
            else:
                self.w = R[0] if R else []; self.r = flat(R[1:])
        self.states = 1
        if op == "s_nop": self.states = int(rest.strip()) + 1
def need(p, c):
    n = 0
    ov = lambda a, b: bool(set(a) & set(b))
    pv = [x for x in p.w if x[0] in "va"]; ps = [x for x in p.w if x[0] == "s"]
    if p.mfma:
        if c.mfma:
            if ov(pv, c.ab): n = max(n, 8)
            if ov(pv, c.srcc) and pv != c.srcc: n = max(n, 6)
        elif (c.valu or c.vmem or c.ds) and (ov(pv, c.r) or ov(pv, c.w)): n = max(n, 8)
        if c.valu and not c.mfma and ov(p.srcc, c.w): n = max(n, 3)
        return n
    if p.valu:
        if c.valu and c.dpp and ov(pv, c.dppsrc): n = max(n, 2)
        if c.perml and ov(pv, c.r): n = max(n, 2)
        if c.rdlane and ov(pv, c.r): n = max(n, 1)
        if c.mfma and ov(pv, c.r): n = max(n, 2)
        if p.trans and (c.valu or c.ds or c.vmem) and ov(pv, c.r): n = max(n, 1)
        if p.dot:
            if c.op == p.op:
                if ov(pv, [x for x in c.r if x not in c.w]): n = max(n, 3)
            elif (c.valu or c.vmem or c.ds) and (ov(pv, c.r) or ov(pv, c.w)): n = max(n, 3)
        if ps:
            if c.valu and ov(ps, c.r): n = max(n, 4 if c.rdlane or c.op.startswith("v_writelane") else 2)
            if c.vmem and ov(ps, c.r): n = max(n, 5)
            if c.salu and ov(ps, c.r): n = max(n, 1)
            if ("s", "exec") in ps:
                if c.dpp: n = max(n, 5)
                if c.mfma or c.perml or c.rdlane: n = max(n, 4)
    if p.salu and ("s", "m0") in p.w and (c.ldsdma or c.op.startswith("v_writelane")): n = max(n, 1)
    if p.vmem and p.data and (c.valu or c.ds or c.vmem) and ov(p.data, c.w): n = max(n, 2)
    return n
class Asm:
    def __init__(self): self.l = []
    def __call__(self, s):
        for line in s.strip().split("\n"):
            line = line.strip()
            if line: self.l.append(line)
    def finish(self):
        out = []; hist = []; nn = 0
        for t in self.l:
            c = Ins(t)
            if c.label: out.append(t); continue
            d = 0; req = 0
            for p in reversed(hist):
                if d >= 8: break
                req = max(req, need(p, c) - d)
                d += p.states
            if req > 0:
                nop = Ins("s_nop %d" % (req - 1)); out.append("    " + nop.text); hist.append(nop); nn += 1
            out.append("    " + t); hist.append(c)
            hist = hist[-12:]
        self.nnops = nn
        return "\n".join(out)
```

```python
import sys, math
from asmlib import Asm
NAME = "recurrent_scan__compressed_kv_cla__geglu_ffn__decode"
DEF = dict(
    NPRE=12,
    G0=20,
    SL3=12,
    SL4=8,
    SLR=2,
    WOPRE=32,
    NT="nt",
    STAMP=0,
    OUTSC="",
    BUDGET=0x40000,
)
FLAGS, XN, QP, MX, CX, FX, LINV, WSC, CB, PX = 0, 256, 1536, 2112, 2368, 2944, 3072, 3088, 3472, 6160
QA = 11776; CKV = 28672; RS = 1056; LDS_TOTAL = 163840
F_QP, F_QA, F_MX, F_PX, F_CB, F_CX, F_FX, F_XI, F_G3, F_YP = range(10)
W_EP = 0; W_H2 = 0x10000; W_H3 = 0x100000; W_S = 0x500000; W_F = 0x600000; W_ST = 0x800000; WS_BYTES = 0x1000000
OUT, WS, X, CK, WQ, WUK, WUV, WO, WF, WD = 24, 28, 32, 36, 40, 44, 48, 52, 56, 60
sWV, sR, sX, sS, sG, sU, sH, sDH, sJ, sKB, sT, sBUD = 64, 65, 66, 67, 68, 69, 70, 71, 72, 73, 74, 75
sLO, sHI = 20, 21
srd = lambda b: "s[%d:%d]" % (b, b + 3)
vr = lambda b, n=4: "v[%d:%d]" % (b, b + n - 1) if n > 1 else "v%d" % b
LOG2E = 1.4426950408889634
import struct
f32 = lambda x: "0x%08x" % struct.unpack("<I", struct.pack("<f", x))[0]

def gen(**kw):
    p = dict(DEF); p.update(kw)
    NT = p["NT"]
    a = Asm()
    nst = [0]
    def stamp():
        if p["STAMP"]:
            assert nst[0] < 12
            a("s_memrealtime s[%d:%d]" % (76 + 2 * nst[0], 77 + 2 * nst[0])); nst[0] += 1
    uid = [0]
    def lab(s):
        uid[0] += 1; return "L_%s_%d" % (s, uid[0])
    vL, vZ, vONE, vFA = 1, 2, 3, 4
    def flag_set(k):
        a("s_mov_b64 exec, 1")
        a("ds_write_b32 v%d, v%d offset:%d" % (vFA, vONE, FLAGS + 16 * k))
        a("s_mov_b64 exec, -1")
    def flag_wait(k, tmp, reads=(), n=4):
        L = lab("fw"); D = lab("fd")
        a(L + ":")
        a("ds_read_b128 %s, v%d offset:%d" % (vr(tmp), vZ, FLAGS + 16 * k))
        for r in reads: a(r)
        a("s_waitcnt lgkmcnt(0)")
        a("v_min3_u32 v%d, v%d, v%d, v%d" % (tmp, tmp, tmp + 1, tmp + 2))
        if n == 4: a("v_min_u32 v%d, v%d, v%d" % (tmp, tmp, tmp + 3))
        a("v_cmp_eq_u32 vcc, 0, v%d" % tmp)
        a("s_cbranch_vccz " + D)
        a("s_sub_u32 s%d, s%d, 1" % (sBUD, sBUD))
        a("s_cmp_gt_i32 s%d, 0" % sBUD)
        a("s_cbranch_scc1 " + L)
        a(D + ":")
    def allred(op, v, t):
        for r in (8, 4, 2, 1):
            a("%s_dpp v%d, v%d, v%d row_ror:%d row_mask:0xf bank_mask:0xf" % (op, v, v, v, r))
        for sw in ("16", "32"):
            a("v_mov_b32 v%d, v%d" % (t, v))
            a("v_permlane%s_swap_b32 v%d, v%d" % (sw, t, v))
            a("%s v%d, v%d, v%d" % (op, v, v, t))
    def bfr(d, s):
        a("v_cvt_pk_bf16_f32 v%d, v%d, v%d" % (d, s, s))
        a("v_and_b32 v%d, 0xffff0000, v%d" % (d, d))
    def retry(L, D):
        a("s_cbranch_scc1 " + D)
        if p["SLR"]: a("s_sleep %d" % p["SLR"])
        a("s_sub_u32 s%d, s%d, 1" % (sBUD, sBUD))
        a("s_cmp_gt_i32 s%d, 0" % sBUD)
        a("s_cbranch_scc1 " + L)
        a(D + ":")
    def check_tags(tagregs):
        for r in tagregs: a("v_cmpx_eq_u32 vcc, s%d, v%d" % (sT, r))
        a("s_cmp_eq_u64 exec, -1")
        a("s_mov_b64 exec, -1")

    a("s_cmp_ge_u32 s2, 256")
    a("s_cbranch_scc1 L_end")
    stamp()
    a("s_getpc_b64 s[4:5]")
    for srdb, off in ((X, 0), (WQ, 16), (WS, 96), (WUK, 24), (CK, 8)):
        a("s_load_dwordx2 s[%d:%d], s[0:1], %d" % (srdb, srdb + 1, off))
    a("s_and_b32 s4, s4, 0xffffff00")
    a("s_lshr_b32 s%d, s2, 3" % sS)
    a("s_and_b32 s6, s%d, 7" % sS)
    a("s_lshl_b32 s6, s6, 11")
    a("v_lshl_add_u32 v5, v0, 2, s6")
    a("v_min_u32 v5, L_code_end-%s_kernel-4, v5" % NAME)
    a("global_load_dword v6, v5, s[4:5]")
    for srdb, off in ((WUV, 32), (WO, 40), (WF, 56), (22, 64), (WD, 72), (OUT, 80)):
        a("s_load_dwordx2 s[%d:%d], s[0:1], %d" % (srdb, srdb + 1, off))
    a("v_lshrrev_b32 v7, 6, v0")
    a("v_and_b32 v%d, 63, v0" % vL)
    a("v_readfirstlane_b32 s%d, v7" % sWV)
    a("s_mov_b32 s3, 0x20000")
    for srdb, n in ((X, 1280), (WQ, 640 * 8192), (WS, WS_BYTES), (WUK, 512 * 8192), (CK, 8192 * 1024), (WUV, 512 * 8192),
                    (WO, 4096 * 1280), (WF, 640 * 3456), (WD, 1728 * 1280), (OUT, 1280)):
        a("s_mov_b32 s%d, %d" % (srdb + 2, n))
        a("s_mov_b32 s%d, s3" % (srdb + 3))
    a("s_and_b32 s%d, s2, 7" % sX)
    a("s_and_b32 s%d, s%d, 3" % (sG, sS))
    a("s_lshr_b32 s%d, s%d, 2" % (sU, sS))
    a("s_lshl_b32 s%d, s%d, 3" % (sH, sG))
    a("s_add_u32 s%d, s%d, s%d" % (sH, sH, sX))
    a("s_and_b32 s%d, s%d, 1" % (sDH, sU))
    a("s_lshr_b32 s%d, s%d, 1" % (sJ, sU))
    a("s_and_b32 s%d, s%d, 3" % (sR, sWV))
    a("s_mov_b32 s%d, %d" % (sBUD, p["BUDGET"]))
    a("v_mov_b32 v%d, 0" % vZ)
    a("v_mov_b32 v%d, 1" % vONE)
    a("v_lshlrev_b32 v8, 2, v%d" % vL)
    a("ds_write_b32 v8, v%d offset:%d" % (vZ, FLAGS))
    a("s_lshl_b32 s6, s%d, 2" % sR)
    a("v_mov_b32 v%d, s6" % vFA)
    a("s_mov_b32 s%d, 0x05040100" % sLO)
    a("s_mov_b32 s%d, 0x07060302" % sHI)
    a("s_cmp_ge_u32 s%d, 4" % sWV)
    a("s_cbranch_scc1 L_X")

    vA, vO16, vO4, vEP = 10, 11, 8, 9
    RW, CO, AC, TM, UK, XR = 16, 96, 106, 114, 124, 140
    a("s_lshl_b32 s7, s%d, 8" % sH)
    a("s_lshl_b32 s8, s%d, 7" % sDH)
    a("s_add_u32 s7, s7, s8")
    a("s_mul_i32 s8, s%d, %d" % (sR, 160 * 8192))
    a("s_add_u32 s8, s8, s7")
    a("v_lshrrev_b32 v12, 3, v%d" % vL)
    a("v_mul_u32_u24 v%d, %d, v12" % (vA, 20 * 8192))
    a("v_and_b32 v13, 7, v%d" % vL)
    a("v_lshl_add_u32 v%d, v13, 4, v%d" % (vA, vA))
    a("v_lshlrev_b32 v%d, 4, v%d" % (vO16, vL))
    a("s_waitcnt lgkmcnt(0)")
    a("buffer_load_dwordx4 %s, v%d, %s, 0 offen" % (vr(XR), vO16, srd(X)))
    a("buffer_load_dword v%d, v%d, %s, 0 offen offset:1024" % (XR + 4, vO4, srd(X)))
    a("buffer_load_dword v%d, v%d, %s, 0 offen offset:%d sc1" % (vEP, vZ, srd(WS), W_EP))
    def wq_load(i):
        a("buffer_load_dwordx4 %s, v%d, %s, s8 offen %s" % (vr(RW + 4 * i), vA, srd(WQ), NT))
        if i < 19: a("s_add_u32 s8, s8, 8192")
    NPRE = p["NPRE"]
    for i in range(NPRE): wq_load(i)
    stamp()
    vB = 14
    a("v_and_b32 v15, 15, v%d" % vL)
    a("v_lshlrev_b32 v%d, 14, v15" % vB)
    a("v_lshrrev_b32 v12, 4, v%d" % vL)
    a("v_lshl_add_u32 v%d, v12, 4, v%d" % (vB, vB))
    a("s_lshl_b32 s9, s%d, 2" % sJ)
    a("s_add_u32 s9, s9, s%d" % sR)
    a("s_lshl_b32 s9, s9, 18")
    a("s_add_u32 s9, s9, s7")
    a("s_add_u32 s10, s9, 8192")
    E = 148; T0, T1, T2 = 160, 161, 162
    a("s_waitcnt vmcnt(%d)" % (NPRE + 1))
    for k in range(5):
        a("v_lshlrev_b32 v%d, 16, v%d" % (E + 2 * k, XR + k))
        a("v_and_b32 v%d, 0xffff0000, v%d" % (E + 2 * k + 1, XR + k))
    a("v_add_f32 v%d, v%d, v%d" % (T0, E, E + 1))
    for k in range(2, 10): a("v_add_f32 v%d, v%d, v%d" % (T0, T0, E + k))
    allred("v_add_f32", T0, T1)
    a("v_mul_f32 v%d, %s, v%d" % (T0, f32(1.0 / 640), T0))
    a("v_sub_f32 v%d, v%d, v%d" % (T2, E, T0))
    a("v_mul_f32 v%d, v%d, v%d" % (T1 + 2, T2, T2))
    for k in range(1, 10):
        a("v_sub_f32 v%d, v%d, v%d" % (T2, E + k, T0))
        a("v_fmac_f32 v%d, v%d, v%d" % (T1 + 2, T2, T2))
    V = T1 + 2
    allred("v_add_f32", V, T1)
    a("v_mul_f32 v%d, %s, v%d" % (V, f32(1.0 / 640), V))
    bfr(V, V)
    a("v_add_f32 v%d, %s, v%d" % (V, f32(1e-5), V))
    bfr(V, V)
    a("v_sqrt_f32 v%d, v%d" % (V, V))
    bfr(V, V)
    a("v_rcp_f32 v%d, v%d" % (V, V))
    bfr(T0, T0)
    for k in range(5):
        a("v_sub_f32 v%d, v%d, v%d" % (E + 2 * k, E + 2 * k, T0))
        a("v_sub_f32 v%d, v%d, v%d" % (E + 2 * k + 1, E + 2 * k + 1, T0))
        a("v_cvt_pk_bf16_f32 v%d, v%d, v%d" % (T2, E + 2 * k, E + 2 * k + 1))
        a("v_lshlrev_b32 v%d, 16, v%d" % (E + 2 * k, T2))
        a("v_and_b32 v%d, 0xffff0000, v%d" % (E + 2 * k + 1, T2))
        a("v_mul_f32 v%d, v%d, v%d" % (E + 2 * k, E + 2 * k, V))
        a("v_mul_f32 v%d, v%d, v%d" % (E + 2 * k + 1, E + 2 * k + 1, V))
        a("v_cvt_pk_bf16_f32 v%d, v%d, v%d" % (XR + k, E + 2 * k, E + 2 * k + 1))
    a("ds_write_b128 v%d, %s offset:%d" % (vO16, vr(XR), XN))
    a("ds_write_b32 v%d, v%d offset:%d" % (vO4, XR + 4, XN + 1024))
    a("s_mul_i32 s11, s%d, 320" % sR)
    a("v_lshrrev_b32 v12, 3, v%d" % vL)
    a("v_mul_u32_u24 v12, 40, v12")
    a("v_add_u32 v12, s11, v12")
    for k in range(5): a("ds_read_b64 %s, v12 offset:%d" % (vr(CO + 2 * k, 2), XN + 8 * k))
    for i in range(NPRE, 20): wq_load(i)
    for t in range(2):
        for ks in range(2):
            a("buffer_load_dwordx4 %s, v%d, %s, s%d offen offset:%d %s" % (vr(UK + 8 * t + 4 * ks), vB, srd(WUK), 9 + t, 64 * ks, NT))
    a("s_waitcnt lgkmcnt(0)")
    a("s_barrier")
    stamp()
    for k in range(8): a("v_mov_b32 v%d, 0" % (AC + k))
    for k in range(10):
        a("s_waitcnt vmcnt(%d)" % (22 - 2 * k))
        if k == 0:
            a("v_readfirstlane_b32 s%d, v%d" % (sT, vEP))
            a("s_mul_i32 s%d, s%d, 0x9E3779B1" % (sT, sT))
            a("s_add_u32 s%d, s%d, 0x7F4A7C15" % (sT, sT))
        r0, r1 = RW + 8 * k, RW + 8 * k + 4
        for d in range(4):
            a("v_perm_b32 v%d, v%d, v%d, s%d" % (TM + 2 * d, r1 + d, r0 + d, sLO))
            a("v_perm_b32 v%d, v%d, v%d, s%d" % (TM + 2 * d + 1, r1 + d, r0 + d, sHI))
        for d in range(8):
            a("v_dot2c_f32_bf16 v%d, v%d, v%d" % (AC + d, CO + k, TM + d))
    stamp()
    for k in range(4): a("v_permlane32_swap_b32 v%d, v%d" % (AC + k, AC + 4 + k))
    for k in range(4): a("v_add_f32 v%d, v%d, v%d" % (AC + k, AC + k, AC + 4 + k))
    for k in range(2): a("v_permlane16_swap_b32 v%d, v%d" % (AC + k, AC + 2 + k))
    for k in range(2): a("v_add_f32 v%d, v%d, v%d" % (AC + k, AC + k, AC + 2 + k))
    a("v_lshrrev_b32 v12, 4, v%d" % vL)
    a("v_lshlrev_b32 v12, 2, v12")
    a("v_lshl_add_u32 v12, v13, 4, v12")
    a("s_mul_i32 s11, s%d, 144" % sR)
    a("v_add_u32 v12, s11, v12")
    for k in range(2): a("v_add_f32_dpp v%d, v%d, v%d row_ror:8 row_mask:0xf bank_mask:0xf" % (AC + k, AC + k, AC + k))
    a("v_cvt_pk_bf16_f32 v%d, v%d, v%d" % (AC, AC, AC + 1))
    a("ds_write_b32 v12, v%d offset:%d" % (AC, QP))
    flag_set(F_QP)
    vV4 = 5
    a("v_and_b32 v12, 3, v%d" % vL)
    a("v_mul_u32_u24 v%d, 144, v12" % vV4)
    a("v_lshrrev_b32 v12, 4, v%d" % vL)
    a("v_lshl_add_u32 v%d, v12, 4, v%d" % (vV4, vV4))
    a("s_lshl_b32 s11, s%d, 6" % sG)
    a("s_lshl_b32 s12, s%d, 4" % sJ)
    a("s_add_u32 s11, s11, s12")
    a("s_lshl_b32 s12, s%d, 3" % sDH)
    a("s_add_u32 s11, s11, s12")
    a("s_add_u32 s11, s11, s%d" % sX)
    a("s_lshl_b32 s11, s11, 2")
    a("s_add_u32 s11, s11, s%d" % sR)
    a("s_lshl_b32 s11, s11, 7")
    a("s_add_u32 s11, s11, %d" % W_H2)
    a("v_lshlrev_b32 v12, 3, v15")
    QF = 16; BA = 24; GR = 32
    for k in range(8): a("v_mov_b32 v%d, 0" % (BA + k))
    a("v_mov_b32 v%d, s%d" % (GR + 3, sT))
    a("v_mov_b32 v%d, 0" % (GR + 2))
    flag_wait(F_QP, 36, ["ds_read_b128 %s, v%d offset:%d" % (vr(QF + 4 * ks), vV4, QP + 64 * ks) for ks in range(2)])
    a("s_waitcnt vmcnt(0)")
    for ks in range(2):
        for t in range(2):
            a("v_mfma_f32_16x16x32_bf16 %s, %s, %s, %s" % (vr(BA + 4 * t), vr(QF + 4 * ks), vr(UK + 8 * t + 4 * ks), vr(BA + 4 * t)))
    a("s_mov_b32 s12, %s" % f32(LOG2E * 128 ** -0.5))
    for t in range(2):
        b = BA + 4 * t
        a("v_add_f32 v%d, v%d, v%d" % (b, b, b + 1))
        a("v_add_f32 v%d, v%d, v%d" % (b + 2, b + 2, b + 3))
        a("v_add_f32 v%d, v%d, v%d" % (b, b, b + 2))
        a("v_mul_f32 v%d, s12, v%d" % (b, b))
    a("v_cvt_pk_bf16_f32 v%d, v%d, v%d" % (GR, BA, BA + 4))
    a("v_mov_b32_dpp v%d, v%d quad_perm:[1,1,3,3] row_mask:0xf bank_mask:0xf" % (GR + 1, GR))
    a("s_mov_b64 exec, 0x5555")
    a("buffer_store_dwordx4 %s, v12, %s, s11 offen sc1" % (vr(GR), srd(WS)))
    a("s_mov_b64 exec, -1")
    stamp()
    R0, R1, FR0, UVR, UVF, F1R, F2R, TT = 16, 56, 96, 136, 152, 168, 188, 200
    vF1, vF2a, vF2b, vUV, vOa, vOb = 6, 7, 9, 10, 11, 14
    a("s_lshr_b32 s13, s%d, 3" % sS)
    a("s_lshl_b32 s13, s13, 3")
    a("s_add_u32 s13, s13, s%d" % sX)
    a("s_cmp_lt_u32 s13, 27")
    a("s_cselect_b32 s19, 1, 0")
    a("s_lshl_b32 s13, s13, 7")
    a("s_and_b32 s14, s%d, 7" % sS)
    a("s_lshl_b32 s14, s14, 4")
    a("s_add_u32 s13, s13, s14")
    a("s_cmp_ge_u32 s%d, 2" % sR)
    a("s_cselect_b32 s%d, s22, s%d" % (WF, WF))
    a("s_cselect_b32 s%d, s23, s%d" % (WF + 1, WF + 1))
    a("s_and_b32 s14, s%d, 1" % sR)
    a("s_mul_i32 s15, s14, %d" % (320 * 3456))
    a("s_add_u32 s15, s15, s13")
    a("v_mul_u32_u24 v%d, 3456, v%d" % (vF1, vL))
    a("s_mul_i32 s16, s13, 640")
    a("v_lshrrev_b32 v12, 4, v%d" % vL)
    a("s_lshl_b32 s17, s%d, 8" % sR)
    a("v_lshl_add_u32 v13, v15, 4, s17")
    a("s_lshl_b32 s17, s%d, 6" % sR)
    a("s_add_u32 s17, s17, 1024")
    a("v_lshl_add_u32 v8, v15, 2, s17")
    a("v_mul_u32_u24 v%d, 2560, v12" % vF2a)
    a("v_add_u32 v%d, v%d, v8" % (vF2b, vF2a))
    a("v_add_u32 v%d, v%d, v13" % (vF2a, vF2a))
    a("v_mul_u32_u24 v%d, %d, v12" % (vOa, 8 * 1280))
    a("v_add_u32 v%d, v%d, v8" % (vOb, vOa))
    a("v_add_u32 v%d, v%d, v13" % (vOa, vOa))
    a("v_lshlrev_b32 v%d, 18, v12" % vUV)
    a("v_lshl_add_u32 v%d, v15, 3, v%d" % (vUV, vUV))
    a("s_lshl_b32 s17, s%d, 5" % sJ)
    a("s_add_u32 s17, s17, s%d" % sR)
    a("s_lshl_b32 s17, s17, 15")
    a("s_add_u32 s17, s17, s7")
    a("s_mul_i32 s18, s7, 640")
    flag_wait(F_XI, TT)
    stamp()
    a("s_cmp_eq_u32 s19, 0")
    a("s_cbranch_scc1 L_noffn_ld")
    for i in range(5):
        a("buffer_load_dwordx4 %s, v%d, %s, s15 offen %s" % (vr(F1R + 4 * i), vF1, srd(WF), p.get("NTF", NT)))
        if i < 4: a("s_add_u32 s15, s15, %d" % (64 * 3456))
    for r in range(2):
        a("buffer_load_dwordx4 %s, v%d, %s, s16 offen offset:%d %s" % (vr(F2R + 4 * r), vF2a, srd(WD), 1280 * r, NT))
        a("buffer_load_dword v%d, v%d, %s, s16 offen offset:%d %s" % (F2R + 8 + r, vF2b, srd(WD), 1280 * r, NT))
    a("L_noffn_ld:")
    for s8 in range(8):
        a("buffer_load_dwordx2 %s, v%d, %s, s17 offen %s" % (vr(UVR + 2 * s8, 2), vUV, srd(WUV), NT))
        if s8 < 7: a("s_add_u32 s17, s17, %d" % (8192 * (13 if s8 == 3 else 1)))
    wo = []
    for ks in range(2):
        for s8 in range(8):
            b = R0 if ks == 0 else R1
            im = (s8 % 2) * 1280
            wo.append(["buffer_load_dwordx4 %s, v%d, %s, s18 offen offset:%d %s" % (vr(b + 4 * s8), vOa, srd(WO), im, NT)])
            l2 = ["buffer_load_dword v%d, v%d, %s, s18 offen offset:%d %s" % (b + 32 + s8, vOb, srd(WO), im, NT)]
            if s8 % 2 == 1 and not (ks == 1 and s8 == 7): l2.append("s_add_u32 s18, s18, %d" % (1280 * (26 if s8 == 7 else 2)))
            wo.append(l2)
    WOPRE = p["WOPRE"]
    for l in wo[:WOPRE]:
        for t in l: a(t)
    stamp()
    a("s_cmp_eq_u32 s19, 0")
    a("s_cbranch_scc1 L_noffn")
    a("s_mul_i32 s14, s14, 640")
    a("v_lshl_add_u32 v12, v%d, 1, s14" % vL)
    FC, FA = TT, TT + 10
    for i in range(5): a("ds_read_u16 v%d, v12 offset:%d" % (FC + 2 * i, XN + 128 * i))
    for k in range(8): a("v_mov_b32 v%d, 0" % (FA + k))
    a("s_waitcnt lgkmcnt(0)")
    for i in range(5): a("v_lshlrev_b32 v%d, 16, v%d" % (FC + 2 * i + 1, FC + 2 * i))
    for i in range(5):
        a("s_waitcnt vmcnt(%d)" % (4 - i + 4 + 8 + WOPRE))
        for d in range(4):
            a("v_dot2c_f32_bf16 v%d, v%d, v%d" % (FA + 2 * d, FC + 2 * i, F1R + 4 * i + d))
            a("v_dot2c_f32_bf16 v%d, v%d, v%d" % (FA + 2 * d + 1, FC + 2 * i + 1, F1R + 4 * i + d))
    for k in range(4): a("v_permlane32_swap_b32 v%d, v%d" % (FA + k, FA + 4 + k))
    for k in range(4): a("v_add_f32 v%d, v%d, v%d" % (FA + k, FA + k, FA + 4 + k))
    for k in range(2): a("v_permlane16_swap_b32 v%d, v%d" % (FA + k, FA + 2 + k))
    for k in range(2): a("v_add_f32 v%d, v%d, v%d" % (FA + k, FA + k, FA + 2 + k))
    for r in (8, 4, 2, 1):
        for k in range(2): a("v_add_f32_dpp v%d, v%d, v%d row_ror:%d row_mask:0xf bank_mask:0xf" % (FA + k, FA + k, FA + k, r))
    a("v_lshrrev_b32 v12, 4, v%d" % vL)
    a("v_lshlrev_b32 v12, 3, v12")
    a("s_lshl_b32 s14, s%d, 5" % sR)
    a("v_add_u32 v13, s14, v12")
    a("s_mov_b32 exec_lo, 0x00010001")
    a("s_mov_b32 exec_hi, 0x00010001")
    a("ds_write_b64 v13, %s offset:%d" % (vr(FA, 2), FX))
    flag_set(F_FX)
    FP = TT + 20
    a("s_waitcnt vmcnt(%d)" % (8 + WOPRE))
    for d in range(5):
        r0 = F2R + d if d < 4 else F2R + 8
        r1 = F2R + 4 + d if d < 4 else F2R + 9
        a("v_perm_b32 v%d, v%d, v%d, s%d" % (FP + 2 * d, r1, r0, sLO))
        a("v_perm_b32 v%d, v%d, v%d, s%d" % (FP + 2 * d + 1, r1, r0, sHI))
    GU = TT
    flag_wait(F_FX, TT + 8, ["ds_read_b64 %s, v12 offset:%d" % (vr(GU + 2 * k, 2), FX + 32 * k) for k in range(4)])
    for e in range(2):
        g_, u_, t_, w_ = GU + e, GU + 4 + e, TT + 8, TT + 9
        a("v_add_f32 v%d, v%d, v%d" % (g_, g_, GU + 2 + e))
        a("v_add_f32 v%d, v%d, v%d" % (u_, u_, GU + 6 + e))
        bfr(g_, g_); bfr(u_, u_)
        a("v_mul_f32 v%d, v%d, v%d" % (t_, g_, g_))
        a("v_mul_f32 v%d, %s, v%d" % (t_, f32(0.044715), t_))
        a("v_fma_f32 v%d, v%d, v%d, v%d" % (t_, t_, g_, g_))
        a("v_mul_f32 v%d, %s, v%d" % (t_, f32(-2.0 * math.sqrt(2.0 / math.pi) * LOG2E), t_))
        a("v_exp_f32 v%d, v%d" % (t_, t_))
        a("v_add_f32 v%d, 1.0, v%d" % (t_, t_))
        a("v_rcp_f32 v%d, v%d" % (t_, t_))
        a("v_mul_f32 v%d, v%d, v%d" % (g_, g_, t_))
        bfr(g_, g_)
        a("v_mul_f32 v%d, v%d, v%d" % (g_, g_, u_))
    a("v_cvt_pk_bf16_f32 v%d, v%d, v%d" % (GU, GU, GU + 1))
    DV = TT + 30
    for t in range(10): a("v_dot2_f32_bf16 v%d, v%d, v%d, 0" % (DV + t, FP + t, GU))
    a("v_mov_b32 v%d, 0" % (DV + 10)); a("v_mov_b32 v%d, 0" % (DV + 11))
    for k in range(6): a("v_permlane32_swap_b32 v%d, v%d" % (DV + k, DV + 6 + k))
    for k in range(6): a("v_add_f32 v%d, v%d, v%d" % (DV + k, DV + k, DV + 6 + k))
    for k in range(3): a("v_permlane16_swap_b32 v%d, v%d" % (DV + k, DV + 3 + k))
    FG = TT + 44
    for k in range(3): a("v_add_f32 v%d, v%d, v%d" % (FG + k, DV + k, DV + 3 + k))
    a("v_mov_b32 v%d, s%d" % (FG + 3, sT))
    a("v_lshrrev_b32 v12, 4, v%d" % vL)
    a("v_lshlrev_b32 v12, 4, v12")
    a("v_lshl_add_u32 v12, v15, 6, v12")
    a("s_lshl_b32 s14, s2, 2")
    a("s_add_u32 s14, s14, s%d" % sR)
    a("s_lshl_b32 s14, s14, 10")
    a("s_add_u32 s14, s14, %d" % W_F)
    a("buffer_store_dwordx4 %s, v12, %s, s14 offen sc1" % (vr(FG), srd(WS)))
    a("L_noffn:")
    stamp()
    if WOPRE < 32:
        flag_wait(F_G3, TT, n=3)
        for l in wo[WOPRE:]:
            for t in l: a(t)
    def wait_for(nafter):
        a("s_waitcnt vmcnt(%d)" % nafter)
    wait_for(32)
    for t in range(4):
        for kk in range(4):
            a("v_perm_b32 v%d, v%d, v%d, s%d" % (UVF + 4 * t + kk, UVR + 2 * (2 * kk + 1) + (t >> 1), UVR + 2 * (2 * kk) + (t >> 1), sHI if t & 1 else sLO))
    def wo_perm(src, dst):
        for kk in range(4):
            for t in range(10):
                r0 = src + 4 * (2 * kk) + (t >> 1) if t < 8 else src + 32 + 2 * kk
                r1 = src + 4 * (2 * kk + 1) + (t >> 1) if t < 8 else src + 32 + 2 * kk + 1
                yield kk, "v_perm_b32 v%d, v%d, v%d, s%d" % (dst + 4 * t + kk, r1, r0, sHI if t & 1 else sLO)
    lastk = -1
    for kk, t in wo_perm(R0, FR0):
        if kk != lastk: wait_for(28 - 4 * kk); lastk = kk
        a(t)
    vCB = 6
    a("v_and_b32 v12, 7, v%d" % vL)
    a("v_mul_u32_u24 v%d, 336, v12" % vCB)
    a("v_lshrrev_b32 v12, 4, v%d" % vL)
    a("v_lshl_add_u32 v%d, v12, 4, v%d" % (vCB, vCB))
    a("s_mul_i32 s14, s%d, 80" % sR)
    a("v_add_u32 v%d, s14, v%d" % (vCB, vCB))
    a("v_lshlrev_b32 v13, 1, v12")
    a("v_lshl_add_u32 v13, v15, 3, v13")
    a("s_mul_i32 s14, s%d, 144" % sR)
    a("v_add_u32 v13, s14, v13")
    a("v_cmp_lt_u32 s[12:13], 31, v%d" % vL)
    G1 = TT; CF = TT + 16; LI = TT + 20
    for k in range(16): a("v_mov_b32 v%d, 0" % (G1 + k))
    if p.get("PERM1_EARLY", 1):
        lastk = -1
        for kk, t in wo_perm(R1, R0):
            if kk != lastk: wait_for(12 - 4 * kk); lastk = kk
            a(t)
    stamp()
    flag_wait(F_CB, TT + 24, ["ds_read_b128 %s, v%d offset:%d" % (vr(CF), vCB, CB), "ds_read_b32 v%d, v%d offset:%d" % (LI, vZ, LINV)], n=3)
    stamp()
    for t in range(4):
        a("v_mfma_f32_16x16x32_bf16 %s, %s, %s, %s" % (vr(G1 + 4 * t), vr(CF), vr(UVF + 4 * t), vr(G1 + 4 * t)))
    for t in range(4):
        b = G1 + 4 * t
        a("v_add_f32 v%d, v%d, v%d" % (b, b, b + 1))
        a("v_add_f32 v%d, v%d, v%d" % (b + 2, b + 2, b + 3))
        a("v_add_f32 v%d, v%d, v%d" % (b, b, b + 2))
    a("v_permlane16_swap_b32 v%d, v%d" % (G1, G1 + 4))
    a("v_permlane16_swap_b32 v%d, v%d" % (G1 + 8, G1 + 12))
    a("v_add_f32 v%d, v%d, v%d" % (G1, G1, G1 + 4))
    a("v_add_f32 v%d, v%d, v%d" % (G1 + 8, G1 + 8, G1 + 12))
    a("v_cndmask_b32 v%d, v%d, v%d, s[12:13]" % (G1, G1, G1 + 8))
    a("v_mul_f32 v%d, v%d, v%d" % (G1, G1, LI))
    a("v_cvt_pk_bf16_f32 v%d, v%d, v%d" % (G1, G1, G1))
    a("ds_write_b16 v13, v%d offset:%d" % (G1, CX))
    flag_set(F_CX)
    if not p.get("PERM1_EARLY", 1):
        lastk = -1
        for kk, t in wo_perm(R1, R0):
            if kk != lastk: wait_for(12 - 4 * kk); lastk = kk
            a(t)
    AC2 = R1; XF = TT; SG = TT + 8
    for k in range(40): a("v_mov_b32 v%d, 0" % (AC2 + k))
    a("v_mov_b32 v%d, s%d" % (SG + 3, sT))
    a("v_mov_b32 v%d, 0" % (SG + 1)); a("v_mov_b32 v%d, 0" % (SG + 2))
    a("v_lshlrev_b32 v12, 4, v12")
    a("v_lshl_add_u32 v12, v15, 6, v12")
    a("s_lshl_b32 s14, s2, 2")
    a("s_add_u32 s14, s14, s%d" % sR)
    a("s_lshl_b32 s14, s14, 10")
    a("s_add_u32 s14, s14, %d" % W_S)
    flag_wait(F_CX, TT + 24, ["ds_read_b128 %s, v%d offset:%d" % (vr(XF + 4 * ks), vV4, CX + 64 * ks) for ks in range(2)])
    def fin(t):
        b = AC2 + 4 * t
        a("v_add_f32 v%d, v%d, v%d" % (b, b, b + 1))
        a("v_add_f32 v%d, v%d, v%d" % (b + 2, b + 2, b + 3))
        a("s_nop 0")
        a("v_add_f32_dpp v%d, v%d, v%d quad_perm:[0,1,2,3] row_mask:0x%x bank_mask:0xf" % (SG + t % 3, b, b + 2, 1 << (t // 3)))
    for t in range(10):
        for ks in range(2):
            a("v_mfma_f32_16x16x32_bf16 %s, %s, %s, %s" % (vr(AC2 + 4 * t), vr(XF + 4 * ks), vr((FR0 if ks == 0 else R0) + 4 * t), vr(AC2 + 4 * t)))
        if t >= 2: fin(t - 2)
    fin(8); fin(9)
    a("buffer_store_dwordx4 %s, v12, %s, s14 offen sc1" % (vr(SG), srd(WS)))
    flag_set(F_YP)
    stamp()
    a("s_branch L_fin")

    nst[0] = 1
    a("L_X:")
    a("s_nop 1")
    S0, S1, QB, SA, TX = 64, 128, 192, 16, 24
    vO16, vEP, vQW, vSF, vQB, vT0, vT1 = 5, 6, 7, 8, 9, 10, 11
    a("v_lshlrev_b32 v%d, 4, v%d" % (vO16, vL))
    a("s_lshl_b32 s%d, s%d, 3" % (sKB, sU))
    a("s_add_u32 s%d, s%d, s%d" % (sKB, sKB, sX))
    a("s_lshl_b32 s8, s%d, 2" % sKB)
    a("s_add_u32 s8, s8, s%d" % sR)
    a("s_lshl_b32 s8, s8, 15")
    a("s_mul_i32 s9, s%d, %d" % (sR, 32 * RS))
    a("s_add_u32 s9, s9, %d" % CKV)
    a("s_lshl_b32 s10, s%d, 2" % sG)
    a("s_add_u32 s10, s10, s%d" % sR)
    a("s_lshl_b32 s10, s10, 13")
    a("s_add_u32 s10, s10, %d" % W_H2)
    a("s_add_u32 s11, s10, 4096")
    a("v_and_b32 v15, 15, v%d" % vL)
    a("v_lshrrev_b32 v14, 4, v%d" % vL)
    a("v_lshrrev_b32 v12, 5, v%d" % vL)
    a("v_mul_u32_u24 v%d, %d, v12" % (vQW, RS))
    a("v_and_b32 v12, 31, v%d" % vL)
    a("v_lshl_add_u32 v%d, v12, 3, v%d" % (vQW, vQW))
    a("s_lshl_b32 s12, s%d, 8" % sR)
    a("v_add_u32 v%d, s12, v%d" % (vQW, vQW))
    a("v_mul_u32_u24 v%d, %d, v15" % (vQB, RS))
    a("v_lshl_add_u32 v%d, v14, 4, v%d" % (vQB, vQB))
    a("v_add_u32 v%d, s9, v%d" % (vSF, vQB))
    a("v_lshrrev_b32 v12, 2, v15")
    a("v_lshl_add_u32 v12, v14, 2, v12")
    a("v_mul_u32_u24 v%d, %d, v12" % (vT0, RS))
    a("v_and_b32 v12, 3, v%d" % vL)
    a("v_lshl_add_u32 v%d, v12, 3, v%d" % (vT0, vT0))
    a("s_add_u32 s12, s12, %d" % CKV)
    a("v_add_u32 v%d, s12, v%d" % (vT0, vT0))
    a("v_add_u32 v%d, %d, v%d" % (vT1, 64 * RS, vT0))
    a("s_waitcnt lgkmcnt(0)")
    a("buffer_load_dword v%d, v%d, %s, 0 offen offset:%d sc1" % (vEP, vZ, srd(WS), W_EP))
    a("s_barrier")
    stamp()
    G0 = p["G0"]
    def gather2():
        for i in range(8):
            a("buffer_load_dwordx4 %s, v%d, %s, s%d offen offset:%d sc1" % (vr(S1 + 4 * i), vO16, srd(WS), 10 + i // 4, 1024 * (i % 4)))
    a("s_mov_b32 m0, s9")
    for r in range(32):
        if r == G0: gather2()
        a("buffer_load_dwordx4 v%d, %s, s8 offen %s lds" % (vO16, srd(CK), NT))
        if r < 31:
            a("s_add_u32 m0, m0, %d" % RS)
            a("s_add_u32 s8, s8, 1024")
    if G0 >= 32: gather2()
    flag_set(F_XI)
    stamp()
    a("s_waitcnt vmcnt(40)")
    a("v_readfirstlane_b32 s%d, v%d" % (sT, vEP))
    a("s_mul_i32 s%d, s%d, 0x9E3779B1" % (sT, sT))
    a("s_add_u32 s%d, s%d, 0x7F4A7C15" % (sT, sT))
    for k in range(8): a("v_mov_b32 v%d, 0" % (SA + k))
    t0_early = G0 >= 16
    if t0_early:
        a("s_waitcnt vmcnt(%d)" % (40 - 16))
        for ks in range(16): a("ds_read_b128 %s, v%d offset:%d" % (vr(S0 + 4 * ks), vSF, 64 * ks))
    a("s_waitcnt vmcnt(%d)" % (32 - min(G0, 32)))
    check_tags([S1 + 4 * i + 3 for i in range(8)])
    a("s_cbranch_scc1 L_g2ok")
    a("L_g2r:")
    gather2()
    a("s_waitcnt vmcnt(0)")
    check_tags([S1 + 4 * i + 3 for i in range(8)])
    retry("L_g2r", "L_g2ok")
    stamp()
    for i in range(8): a("ds_write_b64 v%d, %s offset:%d" % (vQW, vr(S1 + 4 * i, 2), QA + 2 * RS * i))
    flag_set(F_QA)
    if not t0_early:
        a("s_waitcnt vmcnt(16)")
        for ks in range(16): a("ds_read_b128 %s, v%d offset:%d" % (vr(S0 + 4 * ks), vSF, 64 * ks))
    flag_wait(F_QA, TX)
    for ks in range(16): a("ds_read_b128 %s, v%d offset:%d" % (vr(QB + 4 * ks), vQB, QA + 64 * ks))
    a("s_waitcnt vmcnt(0)")
    stamp()
    for ks in range(16):
        a("s_waitcnt lgkmcnt(15)")
        a("ds_read_b128 %s, v%d offset:%d" % (vr(S1 + 4 * ks), vSF, 16 * RS + 64 * ks))
        a("v_mfma_f32_16x16x32_bf16 %s, %s, %s, %s" % (vr(SA), vr(S0 + 4 * ks), vr(QB + 4 * ks), vr(SA)))
    for ks in range(16):
        a("s_waitcnt lgkmcnt(%d)" % (15 - ks))
        a("v_mfma_f32_16x16x32_bf16 %s, %s, %s, %s" % (vr(SA + 4), vr(S1 + 4 * ks), vr(QB + 4 * ks), vr(SA + 4)))
    vMW = 12
    a("s_lshl_b32 s12, s%d, 2" % sR)
    a("v_lshl_add_u32 v%d, v15, 4, s12" % vMW)
    a("v_lshlrev_b32 v13, 4, v15")
    for k in range(8): a("v_add_f32_dpp v%d, v%d, v%d row_ror:8 row_mask:0xf bank_mask:0xf" % (SA + k, SA + k, SA + k))
    M = TX + 4; Tm = TX + 5
    a("v_max3_f32 v%d, v%d, v%d, v%d" % (M, SA, SA + 1, SA + 2))
    a("v_max3_f32 v%d, v%d, v%d, v%d" % (M, M, SA + 3, SA + 4))
    a("v_max3_f32 v%d, v%d, v%d, v%d" % (M, M, SA + 5, SA + 6))
    a("v_max_f32 v%d, v%d, v%d" % (M, M, SA + 7))
    for sw in ("16", "32"):
        a("v_mov_b32 v%d, v%d" % (Tm, M))
        a("v_permlane%s_swap_b32 v%d, v%d" % (sw, Tm, M))
        a("v_max_f32 v%d, v%d, v%d" % (M, M, Tm))
    a("v_ceil_f32 v%d, v%d" % (M, M))
    a("s_mov_b64 exec, 0xffff")
    a("ds_write_b32 v%d, v%d offset:%d" % (vMW, M, MX))
    flag_set(F_MX)
    flag_wait(F_MX, TX, ["ds_read_b128 %s, v13 offset:%d" % (vr(TX + 8), MX)])
    stamp()
    PA = S0
    trs = []
    for ks in range(4):
        for T in range(8):
            for tt in range(2):
                off = ((32 * ks + 16 * tt) % 64) * RS + 32 * T
                trs.append("ds_read_b64_tr_b16 %s, v%d offset:%d" % (vr(PA + 32 * ks + 4 * T + 2 * tt, 2), vT0 if ks < 2 else vT1, off))
    NTR0 = p.get("NTR0", 8)
    for t in trs[:NTR0]: a(t)
    a("v_max3_f32 v%d, v%d, v%d, v%d" % (M, TX + 8, TX + 9, TX + 10))
    a("v_max_f32 v%d, v%d, v%d" % (M, M, TX + 11))
    for k in range(8): a("v_sub_f32 v%d, v%d, v%d" % (SA + k, SA + k, M))
    for k in range(8): a("v_exp_f32 v%d, v%d" % (SA + k, SA + k))
    PW = TX + 8
    for k in range(4): a("v_cvt_pk_bf16_f32 v%d, v%d, v%d" % (PW + k, SA + 2 * k, SA + 2 * k + 1))
    a("s_lshl_b32 s12, s%d, 10" % sR)
    a("v_add_u32 v12, s12, v%d" % vO16)
    a("ds_write_b128 v12, %s offset:%d" % (vr(PW), PX))
    flag_set(F_PX)
    PAC, PF = 192, 224
    NTR1 = p.get("NTR1", 16)
    for t in trs[NTR0:NTR1]: a(t)
    for k in range(32): a("v_mov_b32 v%d, 0" % (PAC + k))
    flag_wait(F_PX, TX, ["ds_read_b128 %s, v%d offset:%d" % (vr(PF + 4 * k), vO16, PX + 1024 * k) for k in range(4)])
    stamp()
    LS = TX + 5
    a("v_mov_b32 v%d, 0" % LS)
    a("s_mov_b32 s12, 0x3f803f80")
    issued = NTR1; AHEAD = 12
    for m in range(32):
        ks, T = m // 8, m % 8
        needn = 2 * (m + 1)
        while issued < min(64, needn + AHEAD): a(trs[issued]); issued += 1
        if needn > NTR1: a("s_waitcnt lgkmcnt(%d)" % (issued - needn))
        a("v_mfma_f32_16x16x32_bf16 %s, %s, %s, %s" % (vr(PAC + 4 * T), vr(PA + 32 * ks + 4 * T), vr(PF + 4 * ks), vr(PAC + 4 * T)))
        if m < 16: a("v_dot2c_f32_bf16 v%d, s12, v%d" % (LS, PF + m))
        if m == 17:
            a("v_mov_b32 v%d, v%d" % (TX + 6, LS))
        if m == 18:
            a("v_permlane16_swap_b32 v%d, v%d" % (TX + 6, LS))
            a("v_add_f32 v%d, v%d, v%d" % (LS, LS, TX + 6))
        if m == 19:
            a("v_mov_b32 v%d, v%d" % (TX + 6, LS))
        if m == 20:
            a("v_permlane32_swap_b32 v%d, v%d" % (TX + 6, LS))
            a("v_add_f32 v%d, v%d, v%d" % (LS, LS, TX + 6))
        if m == 22:
            a("v_and_b32 v12, 7, v%d" % vL)
            a("v_mul_u32_u24 v12, %d, v12" % (4 * 24576))
            a("v_bfe_u32 v13, v%d, 3, 1" % vL)
            a("v_lshl_add_u32 v13, v14, 1, v13")
        if m == 23:
            a("v_lshl_add_u32 v12, v13, 4, v12")
            a("s_lshl_b32 s13, s%d, 5" % sG)
            a("s_add_u32 s13, s13, s%d" % sR)
            a("s_lshl_b32 s13, s13, 6")
            a("s_add_u32 s13, s13, s%d" % sKB)
            a("s_mul_i32 s13, s13, 384")
            a("s_add_u32 s13, s13, %d" % W_H3)
            a("v_bfe_u32 v13, v%d, 3, 1" % vL)
            a("v_cmp_eq_u32 s[14:15], 1, v13")
    EE = S0; GO = TX + 8
    for n in range(3): a("v_mov_b32 v%d, s%d" % (GO + 4 * n + 3, sT))
    for k in range(16): a("v_cvt_pk_bf16_f32 v%d, v%d, v%d" % (EE + k, PAC + 2 * k, PAC + 2 * k + 1))
    src = [EE + k for k in range(16)] + [M, LS]
    for n in range(3):
        for q in range(3):
            a("v_cndmask_b32 v%d, v%d, v%d, s[14:15]" % (GO + 4 * n + q, src[3 * n + q], src[9 + 3 * n + q]))
        a("buffer_store_dwordx4 %s, v12, %s, s13 offen offset:%d sc1" % (vr(GO + 4 * n), srd(WS), 128 * n))
    stamp()
    a("s_cmp_eq_u32 s%d, 3" % sR)
    a("s_cbranch_scc1 L_X3")
    GD, GS, PP, CA = 64, 96, 100, 124
    vG, vGS = 7, 8
    a("s_lshl_b32 s13, s%d, 2" % sH)
    a("s_add_u32 s13, s13, s%d" % sJ)
    a("s_mul_i32 s13, s13, 24576")
    a("s_add_u32 s13, s13, %d" % W_H3)
    a("s_lshl_b32 s14, s%d, 7" % sR)
    a("s_add_u32 s14, s14, s13")
    a("v_lshrrev_b32 v12, 3, v%d" % vL)
    a("v_mul_u32_u24 v%d, 3072, v12" % vG)
    a("v_and_b32 v13, 7, v%d" % vL)
    a("v_lshl_add_u32 v%d, v13, 4, v%d" % (vG, vG))
    a("v_mul_u32_u24 v%d, 384, v%d" % (vGS, vL))
    vW1, vW2, vW3 = 9, 10, 11
    a("s_lshl_b32 s15, s%d, 7" % sR)
    a("v_lshl_add_u32 v%d, v%d, 1, s15" % (vW1, vL))
    a("v_lshl_add_u32 v%d, v12, 4, s15" % vW2)
    a("v_mul_u32_u24 v%d, 336, v12" % vW3)
    a("v_lshrrev_b32 v12, 1, v13")
    a("v_mul_u32_u24 v12, 80, v12")
    a("v_add_u32 v%d, v%d, v12" % (vW3, vW3))
    a("v_and_b32 v12, 1, v13")
    a("v_mul_u32_u24 v12, 36, v12")
    a("s_mul_i32 s15, s%d, 12" % sR)
    a("v_add3_u32 v%d, v%d, v12, s15" % (vW3, vW3))
    for k in range(6): a("v_mov_b32 v%d, 0" % (CA + k))
    if p["SL3"]: a("s_sleep %d" % p["SL3"])
    def gather3():
        a("buffer_load_dwordx4 %s, v%d, %s, s13 offen offset:272 sc1" % (vr(GS), vGS, srd(WS)))
        for i in range(8):
            a("buffer_load_dwordx4 %s, v%d, %s, s14 offen offset:%d sc1" % (vr(GD + 4 * i), vG, srd(WS), 384 * i))
    gather3()
    flag_set(F_G3)
    stamp()
    a("s_waitcnt vmcnt(0)")
    check_tags([GS + 3] + [GD + 4 * i + 3 for i in range(8)])
    a("s_cbranch_scc1 L_g3ok")
    a("L_g3r:")
    gather3()
    a("s_waitcnt vmcnt(0)")
    check_tags([GS + 3] + [GD + 4 * i + 3 for i in range(8)])
    retry("L_g3r", "L_g3ok")
    stamp()
    MM, WT, T5 = TX, TX + 1, TX + 2
    perms = []
    for t in range(4):
        for q in range(3):
            perms.append("v_perm_b32 v%d, v%d, v%d, s%d" % (PP + 6 * t + 2 * q, GD + 8 * t + 4 + q, GD + 8 * t + q, sLO))
            perms.append("v_perm_b32 v%d, v%d, v%d, s%d" % (PP + 6 * t + 2 * q + 1, GD + 8 * t + 4 + q, GD + 8 * t + q, sHI))
    pi = iter(perms)
    a("v_mov_b32 v%d, v%d" % (MM, GS + 1))
    for r in (8, 4, 2, 1):
        a(next(pi)); a(next(pi))
        a("v_max_f32_dpp v%d, v%d, v%d row_ror:%d row_mask:0xf bank_mask:0xf" % (MM, MM, MM, r))
    for sw in ("16", "32"):
        a("v_mov_b32 v%d, v%d" % (T5, MM))
        a(next(pi)); a(next(pi))
        a("v_permlane%s_swap_b32 v%d, v%d" % (sw, T5, MM))
        a("v_max_f32 v%d, v%d, v%d" % (MM, MM, T5))
    a("v_sub_f32 v%d, v%d, v%d" % (WT, GS + 1, MM))
    a("v_exp_f32 v%d, v%d" % (WT, WT))
    a(next(pi))
    a("ds_write_b16_d16_hi v%d, v%d offset:%d" % (vW1, WT, WSC))
    WP = TX + 4
    a("ds_read_b128 %s, v%d offset:%d" % (vr(WP), vW2, WSC))
    for t in pi: a(t)
    LL = TX + 8
    a("v_mul_f32 v%d, v%d, v%d" % (LL, WT, GS + 2))
    a("s_waitcnt lgkmcnt(0)")
    for t in range(4):
        for k in range(6): a("v_dot2c_f32_bf16 v%d, v%d, v%d" % (CA + k, WP + t, PP + 6 * t + k))
    allred("v_add_f32", LL, T5)
    for q in range(3): a("v_cvt_pk_bf16_f32 v%d, v%d, v%d" % (CA + q, CA + 2 * q, CA + 2 * q + 1))
    a("v_rcp_f32 v%d, v%d" % (LL, LL))
    a("ds_write2_b32 v%d, v%d, v%d offset0:%d offset1:%d" % (vW3, CA, CA + 1, 0, 1) if False else "v_add_u32 v%d, %d, v%d" % (vW3, CB, vW3))
    a("ds_write2_b32 v%d, v%d, v%d offset0:0 offset1:1" % (vW3, CA, CA + 1))
    a("ds_write_b32 v%d, v%d offset:8" % (vW3, CA + 2))
    a("s_mov_b64 exec, 1")
    a("ds_write_b32 v%d, v%d offset:%d" % (vZ, LL, LINV))
    flag_set(F_CB)
    stamp()
    a("s_branch L_fin")

    a("L_X3:")
    if p["STAMP"]: nst[0] -= 3
    GF, GSs = 64, 80
    a("s_lshr_b32 s12, s%d, 3" % sS)
    a("s_and_b32 s13, s%d, 7" % sS)
    a("s_lshl_b32 s14, s12, 6")
    a("s_lshl_b32 s15, s%d, 3" % sX)
    a("s_add_u32 s14, s14, s15")
    a("s_add_u32 s14, s14, s13")
    a("s_lshl_b32 s14, s14, 4")
    a("s_lshr_b32 s16, s13, 2")
    a("s_lshl_b32 s17, s%d, 1" % sX)
    a("s_add_u32 s16, s16, s17")
    a("s_and_b32 s17, s%d, 3" % sS)
    a("s_mul_i32 s17, s17, 3")
    a("v_lshlrev_b32 v12, 1, v14")
    a("v_mov_b32 v13, 0x98")
    a("v_bfe_u32 v12, v13, v12, 2")
    a("v_add_u32 v12, s17, v12")
    a("s_lshl_b32 s18, s12, 7")
    a("s_lshl_b32 s19, s16, 3")
    a("s_add_u32 s18, s18, s19")
    a("s_lshl_b32 s19, s12, 5")
    a("s_lshl_b32 s16, s16, 1")
    a("s_add_u32 s19, s19, s16")
    a("s_add_u32 s19, s19, 504")
    a("v_add_u32 v13, s18, v12")
    a("v_add_u32 v7, s19, v12")
    a("v_cmp_gt_u32 vcc, 8, v12")
    a("v_cndmask_b32 v7, v7, v13, vcc")
    a("v_lshlrev_b32 v7, 1, v7")
    a("v_cmp_gt_u32 vcc, 10, v12")
    a("s_mov_b32 s16, 0x00010001")
    a("s_mov_b32 s17, 0x00000001")
    a("s_and_b64 s[16:17], s[16:17], vcc")
    a("v_mov_b32 v13, 0x10000")
    a("v_cndmask_b32 v7, v13, v7, s[16:17]")
    a("buffer_load_ushort v8, v7, %s, 0 offen" % srd(X))
    a("v_lshlrev_b32 v9, 12, v%d" % vL)
    a("s_add_u32 s4, s14, %d" % W_F)
    a("s_add_u32 s8, s14, %d" % W_S)
    for i in range(1, 4):
        a("s_add_u32 s%d, s4, %d" % (4 + i, i * 64 * 4096))
        a("s_add_u32 s%d, s8, %d" % (8 + i, i * 64 * 4096))
    a("s_mov_b32 s18, 0x07070707")
    a("s_mov_b32 s19, 0x07070707")
    for k in range(3): a("v_mov_b32 v%d, 0" % (GF + 12 + k))
    a("v_mov_b32 v%d, s%d" % (GF + 15, sT))
    def red3(B, D, t):
        for k in range(3):
            a("v_add_f32 v%d, v%d, v%d" % (B + k, B + k, B + 4 + k))
            a("v_add_f32 v%d, v%d, v%d" % (B + 8 + k, B + 8 + k, B + 12 + k))
        for k in range(3): a("v_add_f32 v%d, v%d, v%d" % (B + k, B + k, B + 8 + k))
        a("v_mov_b32 v%d, v%d" % (t, B + 2))
        a("v_permlane32_swap_b32 v%d, v%d" % (B, B + 1))
        a("v_permlane32_swap_b32 v%d, v%d" % (t, B + 2))
        a("v_add_f32 v%d, v%d, v%d" % (B, B, B + 1))
        a("v_add_f32 v%d, v%d, v%d" % (t, t, B + 2))
        a("v_permlane16_swap_b32 v%d, v%d" % (B, t))
        a("v_add_f32 v%d, v%d, v%d" % (D, B, t))
        for r in (8, 4, 2, 1):
            a("v_add_f32_dpp v%d, v%d, v%d row_ror:%d row_mask:0xf bank_mask:0xf" % (D, D, D, r))
    if p.get("SLF", 16): a("s_sleep %d" % p.get("SLF", 16))
    a("L_gfr:")
    for i in range(3): a("buffer_load_dwordx4 %s, v9, %s, s%d offen sc1" % (vr(GF + 4 * i), srd(WS), 4 + i))
    a("s_mov_b64 exec, s[18:19]")
    a("buffer_load_dwordx4 %s, v9, %s, s7 offen sc1" % (vr(GF + 12), srd(WS)))
    a("s_mov_b64 exec, -1")
    a("s_waitcnt vmcnt(0)")
    check_tags([GF + 4 * i + 3 for i in range(4)])
    if p.get("SLRF", 8):
        a("s_cbranch_scc1 L_gfok")
        a("s_sleep %d" % p.get("SLRF", 8))
        a("s_cmp_eq_u32 s3, 0")
    retry("L_gfr", "L_gfok")
    stamp()
    GG, T6 = TX, TX + 1
    red3(GF, GG, T6)
    bfr(GG, GG)
    a("v_mul_f32 v%d, %s, v%d" % (T6, f32(-LOG2E), GG))
    a("v_exp_f32 v%d, v%d" % (T6, T6))
    a("v_add_f32 v%d, 1.0, v%d" % (T6, T6))
    a("v_rcp_f32 v%d, v%d" % (T6, T6))
    a("v_mul_f32 v%d, v%d, v%d" % (GG, GG, T6))
    bfr(GG, GG)
    a("v_lshlrev_b32 v8, 16, v8")
    flag_wait(F_YP, TX + 4)
    if p["SL4"]: a("s_sleep %d" % p["SL4"])
    stamp()
    a("L_g4r:")
    for i in range(4): a("buffer_load_dwordx4 %s, v9, %s, s%d offen sc1" % (vr(GSs + 4 * i), srd(WS), 8 + i))
    a("s_waitcnt vmcnt(0)")
    check_tags([GSs + 4 * i + 3 for i in range(4)])
    retry("L_g4r", "L_g4ok")
    stamp()
    SS = TX + 2
    red3(GSs, SS, T6)
    bfr(SS, SS)
    a("v_mul_f32 v%d, v%d, v%d" % (SS, SS, GG))
    bfr(SS, SS)
    a("v_add_f32 v%d, v%d, v8" % (SS, SS))
    a("v_cvt_pk_bf16_f32 v%d, v%d, v%d" % (SS, SS, SS))
    a("buffer_store_short v%d, v7, %s, 0 offen %s" % (SS, srd(OUT), p["OUTSC"]))
    a("s_cmp_lg_u32 s2, 0")
    a("s_cbranch_scc1 L_fin")
    a("v_mov_b32 v12, s%d" % sT)
    a("s_mov_b64 exec, 1")
    a("buffer_store_dword v12, v%d, %s, 0 offen offset:%d sc1" % (vZ, srd(WS), W_EP))
    a("L_fin:")
    if p["STAMP"]:
        a("s_mov_b64 exec, -1")
        a("s_memrealtime s[100:101]")
        a("s_waitcnt lgkmcnt(0)")
        a("v_mov_b32 v12, 0")
        for k in range(13): a("v_writelane_b32 v12, s%d, %d" % (76 + 2 * k, k))
        a("v_writelane_b32 v12, s%d, 13" % sBUD)
        a("s_lshl_b32 s4, s2, 3")
        a("s_add_u32 s4, s4, s%d" % sWV)
        a("s_lshl_b32 s4, s4, 6")
        a("s_add_u32 s4, s4, %d" % W_ST)
        a("v_lshlrev_b32 v13, 2, v%d" % vL)
        a("s_mov_b64 exec, 0xffff")
        a("buffer_store_dword v12, v13, %s, s4 offen" % srd(WS))
    a("L_end:")
    body = a.finish()
    return body, a.nnops

HEAD = open("cdna_kernels/%s.s.ref" % NAME).read().split("; Override launch")[0]
def full(**kw):
    body, nn = gen(**kw)
    s = HEAD
    s += "; One persistent launch: 256 workgroups (one per CU) x 8 waves; see gen notes in the comments below.\n"
    s += "; @launch grid=(256,1,1) block=(512,1,1) lds=%d\n" % LDS_TOTAL
    s += '.amdgcn_target "amdgcn-amd-amdhsa--gfx950"\n.text\n.globl %s_kernel\n.p2align 8\n.type %s_kernel,@function\n%s_kernel:\n' % (NAME, NAME, NAME)
    s += body + "\n    s_endpgm\nL_code_end:\n"
    s += '''.section .rodata,"a"
.p2align 6
.amdhsa_kernel %s_kernel
  .amdhsa_next_free_vgpr 256
  .amdhsa_next_free_sgpr 102
  .amdhsa_accum_offset 256
  .amdhsa_group_segment_fixed_size 0
  .amdhsa_kernarg_size 104
  .amdhsa_user_sgpr_count 2
  .amdhsa_user_sgpr_kernarg_segment_ptr 1
  .amdhsa_system_sgpr_workgroup_id_x 1
.end_amdhsa_kernel
''' % NAME
    return s
if __name__ == "__main__":
    kw = {}
    out = "cdna_kernels/%s.s" % NAME
    for arg in sys.argv[1:]:
        k, v = arg.split("=", 1)
        if k == "out": out = v
        else: kw[k] = int(v, 0) if v.lstrip("-").replace("x", "").isalnum() and v[0].isdigit() else v
    open(out, "w").write(full(**kw))
```

```python
import sys, math, struct
from asmlib import Asm
NAME = "recurrent_scan__compressed_kv_cla__geglu_ffn__decode"
DEF = dict(AMODE="ALL", CKW=7, FW=6, WW=12, SPS=1, PRIO=1, SLC=0, PRE1=1, G0=32, SL1=4, NLOC=6, SLH=4, SL3=4, SL4=8, SLR=2, SLF=8, SLW=0, HINTAT=0, NT="nt", STAMP=0, OUTSC="",
           BUDGET=0x40000, LOCAL=1, NTR0=8, NTR1=16, WYGO="BP", CYGO="G2")
FLAGS, XN, MX, CX, FX, LINV, WSC, PX = 0, 256, 2112, 2368, 2944, 3072, 3088, 6160
QA = 11776; CKV = 28672; RS = 1056; LDS_TOTAL = 163840
QP, QPS, CB, CBS, UKL = 11776, 288, 16384, 656, 28672
F_AP, F_QP, F_BP, F_QA, F_MX, F_PX, F_CB, F_CX, F_XI, F_HI, F_YP = range(11)
W_EP, W_HINT, W_H1L, W_H1G, W_H2, W_HF, W_H3, W_S, W_F, W_ST = 0, 0x1000, 0x10000, 0x50000, 0x90000, 0xA0000, 0x100000, 0x500000, 0x600000, 0x800000
WS_BYTES = 0x1000000
OUT, WS, X, CK, WQ, WUK, WUV, WO, WF, WD = 24, 28, 32, 36, 40, 44, 48, 52, 56, 60
sWV, sR, sX, sS, sC, sH, sT, sBUD, sKB = 64, 65, 66, 67, 68, 69, 70, 71, 72
sLO, sHI = 20, 21
srd = lambda b: "s[%d:%d]" % (b, b + 3)
vr = lambda b, n=4: "v[%d:%d]" % (b, b + n - 1) if n > 1 else "v%d" % b
LOG2E = 1.4426950408889634
f32 = lambda x: "0x%08x" % struct.unpack("<I", struct.pack("<f", x))[0]
STN = {}

def gen(**kw):
    p = dict(DEF); p.update(kw)
    NT = p["NT"]
    NTC, NTO = p.get("NTC", NT), p.get("NTO", NT)
    a = Asm()
    cur = ["", 0]
    STN.clear()
    def role(n, start): cur[0] = n; STN[n] = list(STN.get(start, [])) if start else []
    def stamp(name):
        k = len(STN[cur[0]]); STN[cur[0]].append(name)
        assert k < 12
        if p["STAMP"]: a("s_memrealtime s[%d:%d]" % (76 + 2 * k, 77 + 2 * k))
    uid = [0]
    def lab(s):
        uid[0] += 1; return "L_%s_%d" % (s, uid[0])
    vL, vZ, vONE, vFA, vJ, vG = 1, 2, 3, 4, 15, 14
    def flag_set(k):
        a("s_mov_b64 exec, 1")
        a("ds_write_b32 v%d, v%d offset:%d" % (vFA, vONE, FLAGS + 16 * k))
        a("s_mov_b64 exec, -1")
    def budget(L):
        a("s_sub_u32 s%d, s%d, 1" % (sBUD, sBUD))
        a("s_cmp_gt_i32 s%d, 0" % sBUD)
        a("s_cbranch_scc1 " + L)
    def flag_wait(k, tmp, reads=(), n=4, slp=0):
        L = lab("fw"); D = lab("fd")
        a(L + ":")
        a("ds_read_b128 %s, v%d offset:%d" % (vr(tmp), vZ, FLAGS + 16 * k))
        for r in reads: a(r)
        a("s_waitcnt lgkmcnt(0)")
        if n == 2: a("v_min_u32 v%d, v%d, v%d" % (tmp, tmp, tmp + 1))
        if n >= 3: a("v_min3_u32 v%d, v%d, v%d, v%d" % (tmp, tmp, tmp + 1, tmp + 2))
        if n == 4: a("v_min_u32 v%d, v%d, v%d" % (tmp, tmp, tmp + 3))
        a("v_cmp_eq_u32 vcc, 0, v%d" % tmp)
        a("s_cbranch_vccz " + D)
        if slp: a("s_sleep %d" % slp)
        budget(L)
        a(D + ":")
    def swapred(op, sw, v, t):
        a("v_mov_b32 v%d, v%d" % (t, v))
        a("v_permlane%s_swap_b32 v%d, v%d" % (sw, t, v))
        a("%s v%d, v%d, v%d" % (op, v, v, t))
    def ror(op, v, r): a("%s_dpp v%d, v%d, v%d row_ror:%d row_mask:0xf bank_mask:0xf" % (op, v, v, v, r))
    def allred(op, v, t):
        for r in (8, 4, 2, 1): ror(op, v, r)
        for sw in ("16", "32"): swapred(op, sw, v, t)
    def scat(sw, b, n):
        for k in range(n): a("v_permlane%s_swap_b32 v%d, v%d" % (sw, b + k, b + n + k))
        for k in range(n): a("v_add_f32 v%d, v%d, v%d" % (b + k, b + k, b + n + k))
    def bfr(d, s):
        a("v_cvt_pk_bf16_f32 v%d, v%d, v%d" % (d, s, s))
        a("v_and_b32 v%d, 0xffff0000, v%d" % (d, d))
    def check_tags(tagregs):
        for r in tagregs: a("v_cmpx_eq_u32 vcc, s%d, v%d" % (sT, r))
        a("s_cmp_eq_u64 exec, -1")
        a("s_mov_b64 exec, -1")
    def gather(loads, tags, first_wait=0, pre=None, between=None, slr=None, onfail=None):
        L = lab("gr"); D = lab("gd")
        if pre is None:
            a(L + ":")
            loads()
            if between: between()
            a("s_waitcnt vmcnt(%d)" % first_wait)
        else:
            pre()
            check_tags(tags)
            a("s_cbranch_scc1 " + D)
            a(L + ":")
            loads()
            a("s_waitcnt vmcnt(0)")
        check_tags(tags)
        a("s_cbranch_scc1 " + D)
        s = p["SLR"] if slr is None else slr
        if s: a("s_sleep %d" % s)
        if onfail: onfail()
        budget(L)
        a(D + ":")
    def get_tag(v):
        a("s_waitcnt lgkmcnt(0)")
        a("s_mul_i32 s%d, s%d, 0x9E3779B1" % (sT, sT))
        a("s_add_u32 s%d, s%d, 0x7F4A7C15" % (sT, sT))
    def perm(d, hi_, lo_, upper): a("v_perm_b32 v%d, v%d, v%d, s%d" % (d, hi_, lo_, sHI if upper else sLO))
    def gemv_pairs(RW, CO, AC, TM, npair, loads, win):
        for k in range(8): a("v_mov_b32 v%d, 0" % (AC + k))
        total = len(loads); issued = [total - sum(1 for l in loads if l)]
        def upto(n):
            while issued[0] < min(n, total):
                for t in loads[issued[0]]: a(t)
                issued[0] += 1
        upto(win)
        for k in range(npair):
            a("s_waitcnt vmcnt(%d)" % (issued[0] - 2 * (k + 1)))
            upto(2 * (k + 1) + win)
            r0, r1 = RW + 8 * k, RW + 8 * k + 4
            for d in range(4):
                perm(TM + 2 * d, r1 + d, r0 + d, 0); perm(TM + 2 * d + 1, r1 + d, r0 + d, 1)
            for d in range(8): a("v_dot2c_f32_bf16 v%d, v%d, v%d" % (AC + d, CO + k, TM + d))

    role("pro", None)
    a("s_cmp_ge_u32 s2, 256")
    a("s_cbranch_scc1 L_end")
    stamp("start")
    if p["STAMP"]: a("s_memtime s[74:75]")
    SZ = {X: 1280, WQ: 640 * 8192, WS: WS_BYTES, WUK: 512 * 8192, CK: 8192 * 1024, WUV: 512 * 8192, WO: 4096 * 1280, WF: 640 * 3456, WD: 1728 * 1280, OUT: 1280}
    KOFF = {X: 0, CK: 8, WQ: 16, WUK: 24, WUV: 32, WO: 40, WF: 56, 22: 64, WD: 72, OUT: 80, WS: 96}
    def kload(*bs):
        for b in bs: a("s_load_dwordx2 s[%d:%d], s[0:1], %d" % (b, b + 1, KOFF[b]))
    def ksrd(*bs):
        for b in bs:
            a("s_mov_b32 s%d, %d" % (b + 2, SZ[b])); a("s_mov_b32 s%d, s3" % (b + 3))
    kload(WQ, X, WS, CK, WUK)
    a("s_getpc_b64 s[4:5]")
    a("s_and_b32 s4, s4, 0xffffff00")
    a("s_lshr_b32 s%d, s2, 3" % sS)
    a("s_lshr_b32 s%d, s%d, 4" % (sC, sS))
    a("s_and_b32 s%d, s%d, 15" % (sS, sS))
    a("s_lshl_b32 s6, s%d, 11" % sS)
    a("v_lshl_add_u32 v5, v0, 2, s6")
    a("v_min_u32 v5, L_code_end-%s_kernel-4, v5" % NAME)
    a("global_load_dword v255, v5, s[4:5]")
    a("v_lshrrev_b32 v7, 6, v0")
    a("v_and_b32 v%d, 63, v0" % vL)
    a("v_readfirstlane_b32 s%d, v7" % sWV)
    a("s_mov_b32 s3, 0x20000")
    ksrd(WQ, X, WS, CK, WUK)
    a("s_and_b32 s%d, s2, 7" % sX)
    a("s_lshr_b32 s6, s%d, 2" % sS)
    a("s_lshl_b32 s%d, s%d, 2" % (sH, sX))
    a("s_add_u32 s%d, s%d, s6" % (sH, sH))
    a("s_and_b32 s%d, s%d, 3" % (sR, sWV))
    a("v_mov_b32 v%d, 0" % vZ)
    a("v_lshlrev_b32 v8, 2, v%d" % vL)
    a("ds_write_b32 v8, v%d offset:%d" % (vZ, FLAGS))
    a("v_and_b32 v%d, 15, v%d" % (vJ, vL))
    a("v_lshrrev_b32 v%d, 4, v%d" % (vG, vL))
    vO16, vEP = 11, 9
    a("v_lshlrev_b32 v%d, 4, v%d" % (vO16, vL))
    def common2():
        a("s_mov_b32 s%d, %d" % (sBUD, p["BUDGET"]))
        a("v_mov_b32 v%d, 1" % vONE)
        a("s_lshl_b32 s6, s%d, 2" % sR)
        a("v_mov_b32 v%d, s6" % vFA)
        a("s_mov_b32 s%d, 0x05040100" % sLO)
        a("s_mov_b32 s%d, 0x07060302" % sHI)
    epload = lambda: a("s_load_dword s%d, s[%d:%d], %d" % (sT, WS, WS + 1, W_EP))
    a("s_cmp_lt_u32 s%d, 4" % sWV)
    a("s_cbranch_scc1 L_Y")
    a("s_cmp_eq_u32 s%d, 0" % sC)
    a("s_cbranch_scc1 L_WX0")
    a("s_lshr_b32 s7, s%d, 1" % sS)
    a("s_lshl_b32 s%d, s%d, 3" % (sKB, sX))
    a("s_add_u32 s%d, s%d, s7" % (sKB, sKB))
    a("s_lshl_b32 s8, s%d, 2" % sKB)
    a("s_add_u32 s8, s8, s%d" % sR)
    a("s_lshl_b32 s8, s8, 15")
    a("s_mul_i32 s9, s%d, %d" % (sR, 32 * RS))
    a("s_add_u32 s9, s9, %d" % CKV)
    a("s_mov_b32 m0, s9")
    G0 = p["G0"]; NR0 = min(G0, 32)
    a("s_add_u32 s10, s8, %d" % (1024 * NR0))
    a("s_waitcnt lgkmcnt(0)")
    epload()
    a("s_barrier")
    if p["SLC"]: a("s_sleep %d" % p["SLC"])
    a("L_ckv:")
    if p["CKW"]: a("s_waitcnt vmcnt(%d)" % p["CKW"])
    a("buffer_load_dwordx4 v%d, %s, s8 offen %s lds" % (vO16, srd(CK), NTC))
    a("s_add_u32 s8, s8, 1024")
    a("s_add_u32 m0, m0, %d" % RS)
    a("s_cmp_lt_u32 s8, s10")
    a("s_cbranch_scc1 L_ckv")
    a("s_branch L_CX")
    a("L_WX0:")
    vDM = 7; H1 = 96
    a("s_and_b32 s7, s%d, 3" % sS)
    a("s_lshl_b32 s8, s7, 2")
    a("s_add_u32 s8, s8, s%d" % sR)
    a("s_lshl_b32 s8, s8, 18")
    a("s_lshl_b32 s9, s%d, 8" % sH)
    a("s_add_u32 s8, s8, s9")
    a("s_lshl_b32 s9, s%d, 13" % sR)
    a("s_add_u32 s9, s9, %d" % UKL)
    a("s_mov_b32 m0, s9")
    a("v_lshrrev_b32 v12, 5, v%d" % vL)
    a("v_xor_b32 v12, v12, v%d" % vJ)
    a("v_lshlrev_b32 v12, 4, v12")
    a("v_lshl_add_u32 v%d, v%d, 13, v12" % (vDM, vG))
    a("s_mov_b32 s10, 0")
    a("s_waitcnt lgkmcnt(0)")
    epload()
    a("s_barrier")
    a("L_wuk:")
    a("v_xor_b32 v12, s10, v%d" % vDM)
    a("s_add_u32 s10, s10, 32")
    a("buffer_load_dwordx4 v12, %s, s8 offen %s lds" % (srd(WUK), NT))
    a("s_add_u32 s8, s8, 32768")
    a("s_add_u32 m0, m0, 1024")
    a("s_cmp_lt_u32 s10, 256")
    a("s_cbranch_scc1 L_wuk")
    a("s_branch L_WX")

    a("L_Y:")
    role("Y", "pro")
    vA, vO4 = 10, 8
    RW, CO, AC, TM, XR = 16, 96, 106, 114, 140
    ALL = p["AMODE"] == "ALL"
    a("s_and_b32 s7, s%d, 3" % sS)
    if ALL:
        a("s_lshl_b32 s8, s%d, 2" % sC)
        a("s_add_u32 s7, s7, s8")
    a("s_lshl_b32 s7, s7, %d" % (1 if ALL else 2))
    a("s_add_u32 s7, s7, s%d" % sR)
    noq = lambda: a("s_cmp_ge_u32 s%d, 2" % sR) if ALL else a("s_cmp_eq_u32 s%d, 1" % sC)
    a("s_mul_i32 s8, s7, %d" % (40 * 8192))
    a("s_lshl_b32 s9, s%d, 8" % sH)
    a("s_add_u32 s8, s8, s9")
    a("v_mul_u32_u24 v%d, %d, v%d" % (vA, 10 * 8192, vG))
    a("v_lshl_add_u32 v%d, v%d, 4, v%d" % (vA, vJ, vA))
    noq()
    a("s_waitcnt lgkmcnt(0)")
    stamp("karg")
    a("buffer_load_dwordx4 %s, v%d, %s, 0 offen" % (vr(XR), vO16, srd(X)))
    a("buffer_load_dword v%d, v%d, %s, 0 offen offset:1024" % (XR + 4, vO4, srd(X)))
    epload()
    a("s_cbranch_scc1 L_noq")
    for i in range(10):
        a("buffer_load_dwordx4 %s, v%d, %s, s8 offen %s" % (vr(RW + 4 * i), vA, srd(WQ), NT))
        if i < 9: a("s_add_u32 s8, s8, 8192")
    a("s_barrier")
    common2()
    a("s_waitcnt vmcnt(10)")
    a("s_branch L_ln")
    a("L_noq:")
    a("s_barrier")
    common2()
    a("s_waitcnt vmcnt(0)")
    a("L_ln:")
    stamp("x in")
    E = 148; T0, T1, T2, V = 160, 161, 162, 163
    for k in range(5):
        a("v_lshlrev_b32 v%d, 16, v%d" % (E + 2 * k, XR + k))
        a("v_and_b32 v%d, 0xffff0000, v%d" % (E + 2 * k + 1, XR + k))
    a("v_add_f32 v%d, v%d, v%d" % (T0, E, E + 1))
    for k in range(2, 10): a("v_add_f32 v%d, v%d, v%d" % (T0, T0, E + k))
    allred("v_add_f32", T0, T1)
    a("v_mul_f32 v%d, %s, v%d" % (T0, f32(1.0 / 640), T0))
    a("v_sub_f32 v%d, v%d, v%d" % (T2, E, T0))
    a("v_mul_f32 v%d, v%d, v%d" % (V, T2, T2))
    for k in range(1, 10):
        a("v_sub_f32 v%d, v%d, v%d" % (T2, E + k, T0))
        a("v_fmac_f32 v%d, v%d, v%d" % (V, T2, T2))
    allred("v_add_f32", V, T1)
    a("v_mul_f32 v%d, %s, v%d" % (V, f32(1.0 / 640), V))
    bfr(V, V)
    a("v_add_f32 v%d, %s, v%d" % (V, f32(1e-5), V))
    bfr(V, V)
    a("v_sqrt_f32 v%d, v%d" % (V, V))
    bfr(V, V)
    a("v_rcp_f32 v%d, v%d" % (V, V))
    bfr(T0, T0)
    for k in range(5):
        a("v_sub_f32 v%d, v%d, v%d" % (E + 2 * k, E + 2 * k, T0))
        a("v_sub_f32 v%d, v%d, v%d" % (E + 2 * k + 1, E + 2 * k + 1, T0))
        a("v_cvt_pk_bf16_f32 v%d, v%d, v%d" % (T2, E + 2 * k, E + 2 * k + 1))
        a("v_lshlrev_b32 v%d, 16, v%d" % (E + 2 * k, T2))
        a("v_and_b32 v%d, 0xffff0000, v%d" % (E + 2 * k + 1, T2))
        a("v_mul_f32 v%d, v%d, v%d" % (E + 2 * k, E + 2 * k, V))
        a("v_mul_f32 v%d, v%d, v%d" % (E + 2 * k + 1, E + 2 * k + 1, V))
        a("v_cvt_pk_bf16_f32 v%d, v%d, v%d" % (XR + k, E + 2 * k, E + 2 * k + 1))
    a("ds_write_b128 v%d, %s offset:%d" % (vO16, vr(XR), XN))
    get_tag(vEP)
    a("ds_write_b32 v%d, v%d offset:%d" % (vO4, XR + 4, XN + 1024))
    noq()
    a("s_cbranch_scc1 L_aq_done")
    a("s_mul_i32 s11, s7, 80")
    a("v_mul_u32_u24 v12, 20, v%d" % vG)
    a("v_add_u32 v12, s11, v12")
    for k in range(5): a("ds_read_b32 v%d, v12 offset:%d" % (CO + k, XN + 4 * k))
    a("s_lshl_b32 s11, s%d, 4" % sH)
    a("s_add_u32 s11, s11, s7")
    a("s_lshl_b32 s11, s11, 9")
    a("s_add_u32 s12, s11, %d" % W_H1G)
    a("s_add_u32 s11, s11, %d" % W_H1L)
    a("v_lshrrev_b32 v13, 5, v%d" % vL)
    a("v_lshlrev_b32 v13, 4, v13")
    a("v_lshl_add_u32 v13, v%d, 5, v13" % vJ)
    GR = 124
    a("v_mov_b32 v%d, 0" % (GR + 2))
    a("v_mov_b32 v%d, s%d" % (GR + 3, sT))
    stamp("LN")
    a("s_waitcnt lgkmcnt(0)")
    gemv_pairs(RW, CO, AC, TM, 5, [None] * 10, 10)
    stamp("A")
    scat("32", AC, 4); scat("16", AC, 2)
    a("v_cvt_pk_bf16_f32 v%d, v%d, v%d" % (GR + 1, AC, AC + 1))
    a("v_mov_b32 v%d, v%d" % (GR, GR + 1))
    a("v_permlane16_swap_b32 v%d, v%d" % (GR, GR + 1))
    a("s_mov_b32 exec_lo, 0xffff")
    a("s_mov_b32 exec_hi, 0xffff")
    if p["LOCAL"]: a("buffer_store_dwordx4 %s, v13, %s, s11 offen" % (vr(GR), srd(WS)))
    a("buffer_store_dwordx4 %s, v13, %s, s12 offen sc1" % (vr(GR), srd(WS)))
    flag_set(F_AP)
    a("L_aq_done:")
    stamp("H1 pub")
    kload(WUV, WO, WF, 22, WD)
    ksrd(WUV, WO, WF, WD)
    a("s_lshl_b32 s17, s%d, 8" % sR)
    a("v_lshl_add_u32 v13, v%d, 4, s17" % vJ)
    a("s_lshl_b32 s17, s%d, 6" % sR)
    a("s_add_u32 s17, s17, 1024")
    a("v_lshl_add_u32 v8, v%d, 2, s17" % vJ)
    vRS = 5
    a("v_lshlrev_b32 v%d, 4, v%d" % (vRS, vG))
    a("v_lshl_add_u32 v%d, v%d, 6, v%d" % (vRS, vJ, vRS))
    a("s_lshl_b32 s19, s%d, 3" % sS)
    a("s_add_u32 s19, s19, s%d" % sX)
    a("s_lshl_b32 s19, s19, 2")
    a("s_add_u32 s19, s19, s%d" % sR)
    a("s_lshl_b32 s19, s19, 10")
    a("s_cmp_eq_u32 s%d, 1" % sC)
    a("s_cbranch_scc1 L_CY")

    role("WY", "Y")
    R0, R1, FR0, UVR, UVF, TT = 16, 56, 96, 136, 168, 200
    vUV, vOa, vOb, vCB, vV4, vCXW = 10, 11, 9, 6, 7, 12
    a("v_mul_u32_u24 v%d, %d, v%d" % (vOa, 8 * 1280, vG))
    a("v_add_u32 v%d, v%d, v8" % (vOb, vOa))
    a("v_add_u32 v%d, v%d, v13" % (vOa, vOa))
    a("v_lshlrev_b32 v%d, 18, v%d" % (vUV, vG))
    a("v_lshl_add_u32 v%d, v%d, 3, v%d" % (vUV, vJ, vUV))
    a("s_and_b32 s7, s%d, 1" % sS)
    a("s_lshl_b32 s7, s7, 7")
    a("s_lshl_b32 s8, s%d, 8" % sH)
    a("s_add_u32 s7, s7, s8")
    a("s_bfe_u32 s17, s%d, 0x10001" % sS)
    a("s_lshl_b32 s17, s17, 6")
    a("s_add_u32 s17, s17, s%d" % sR)
    a("s_lshl_b32 s17, s17, 15")
    a("s_add_u32 s17, s17, s7")
    a("s_mul_i32 s18, s7, 640")
    a("v_mul_u32_u24 v%d, %d, v%d" % (vCB, CBS, vJ))
    a("v_lshl_add_u32 v%d, v%d, 4, v%d" % (vCB, vG, vCB))
    a("s_mul_i32 s14, s%d, 80" % sR)
    a("v_add_u32 v%d, s14, v%d" % (vCB, vCB))
    a("v_and_b32 v8, 3, v%d" % vL)
    a("v_mul_u32_u24 v%d, 144, v8" % vV4)
    a("v_lshl_add_u32 v%d, v%d, 4, v%d" % (vV4, vG, vV4))
    a("v_lshlrev_b32 v%d, 1, v%d" % (vCXW, vG))
    a("v_lshl_add_u32 v%d, v%d, 3, v%d" % (vCXW, vJ, vCXW))
    a("s_mul_i32 s14, s%d, 144" % sR)
    a("v_add_u32 v%d, s14, v%d" % (vCXW, vCXW))
    a("s_add_u32 s19, s19, %d" % W_S)
    flag_wait({"BP": F_BP, "QP": F_QP}[p["WYGO"]], TT, slp=p["SPS"])
    if p["SLW"]: a("s_sleep %d" % p["SLW"])
    stamp("go")
    wl = []
    for ap in range(2):
        for s8 in range(8):
            wl.append(["buffer_load_dwordx2 %s, v%d, %s, s17 offen %s" % (vr(UVR + 16 * ap + 2 * s8, 2), vUV, srd(WUV), NT)])
            if not (ap == 1 and s8 == 7): wl[-1].append("s_add_u32 s17, s17, %d" % (8192 * (13 if s8 == 3 else 109 if s8 == 7 else 1)))
    for ks in range(2):
        for s8 in range(8):
            b = R0 if ks == 0 else R1
            im = (s8 % 2) * 1280
            wl.append(["buffer_load_dwordx4 %s, v%d, %s, s18 offen offset:%d %s" % (vr(b + 4 * s8), vOa, srd(WO), im, NTO)])
            wl.append(["buffer_load_dword v%d, v%d, %s, s18 offen offset:%d %s" % (b + 32 + s8, vOb, srd(WO), im, NTO)])
            if s8 % 2 == 1 and not (ks == 1 and s8 == 7): wl[-1].append("s_add_u32 s18, s18, %d" % (1280 * (26 if s8 == 7 else 2)))
    wi = [0]
    def wneed(n):
        while True:
            top = min(48, max(n, 0) + p["WW"])
            if wi[0] >= top: break
            for t in wl[wi[0]]: a(t)
            wi[0] += 1
        if n > 0: a("s_waitcnt vmcnt(%d)" % (wi[0] - n))
    def wstep(n0, n):
        for m in range(n0 + 2, n + 1, 2):
            if wi[0] < m:
                wneed(m - p["WW"])
            a("s_waitcnt vmcnt(%d)" % (wi[0] - m))
            top = min(48, m + p["WW"])
            while wi[0] < top:
                for t in wl[wi[0]]: a(t)
                wi[0] += 1
    wneed(0)
    stamp("issued")
    done = 0
    for ap in range(2):
        wstep(done, 8 * (ap + 1)); done = 8 * (ap + 1)
        for t in range(4):
            for kk in range(4):
                perm(UVF + 16 * ap + 4 * t + kk, UVR + 16 * ap + 2 * (2 * kk + 1) + (t >> 1), UVR + 16 * ap + 2 * (2 * kk) + (t >> 1), t & 1)
    for src_, dst in ((R0, FR0), (R1, R0)):
        for kk in range(4):
            wstep(done, done + 4); done += 4
            for t in range(10):
                r0 = src_ + 4 * (2 * kk) + (t >> 1) if t < 8 else src_ + 32 + 2 * kk
                r1 = src_ + 4 * (2 * kk + 1) + (t >> 1) if t < 8 else src_ + 32 + 2 * kk + 1
                perm(dst + 4 * t + kk, r1, r0, t & 1)
    G1 = TT; CF = TT + 16; LI = TT + 24; AC2 = R1; XF = UVR; SG = UVR + 8
    a("v_mov_b32 v%d, s%d" % (SG + 3, sT))
    a("v_mov_b32 v%d, 0" % (SG + 1)); a("v_mov_b32 v%d, 0" % (SG + 2))
    stamp("ready")
    if p["SPS"]: flag_wait(F_HI, TT + 28, n=1, slp=2 * p["SPS"])
    flag_wait(F_CB, TT + 28, ["ds_read_b128 %s, v%d offset:%d" % (vr(CF + 4 * ap), vCB, CB + 320 * ap) for ap in range(2)] +
              ["ds_read_b32 v%d, v%d offset:%d" % (LI, vZ, LINV)])
    stamp("CB")
    for ap in range(2):
        for t in range(4):
            a("v_mfma_f32_16x16x32_bf16 %s, %s, %s, %s" % (vr(G1 + 4 * t), vr(CF + 4 * ap), vr(UVF + 16 * ap + 4 * t), vr(G1 + 4 * t) if ap else "0"))
    for t in range(4):
        b = G1 + 4 * t
        a("v_add_f32 v%d, v%d, v%d" % (b, b, b + 1))
        a("v_add_f32 v%d, v%d, v%d" % (b + 2, b + 2, b + 3))
        a("v_add_f32 v%d, v%d, v%d" % (b, b, b + 2))
    a("v_permlane16_swap_b32 v%d, v%d" % (G1, G1 + 4))
    a("v_permlane16_swap_b32 v%d, v%d" % (G1 + 8, G1 + 12))
    a("v_add_f32 v%d, v%d, v%d" % (G1, G1, G1 + 4))
    a("v_add_f32 v%d, v%d, v%d" % (G1 + 8, G1 + 8, G1 + 12))
    a("v_permlane32_swap_b32 v%d, v%d" % (G1, G1 + 8))
    a("v_add_f32 v%d, v%d, v%d" % (G1, G1, G1 + 8))
    a("v_mul_f32 v%d, v%d, v%d" % (G1, G1, LI))
    a("v_cvt_pk_bf16_f32 v%d, v%d, v%d" % (G1, G1, G1))
    a("ds_write_b16 v%d, v%d offset:%d" % (vCXW, G1, CX))
    flag_set(F_CX)
    flag_wait(F_CX, TT + 28, ["ds_read_b128 %s, v%d offset:%d" % (vr(XF + 4 * ks), vV4, CX + 64 * ks) for ks in range(2)])
    stamp("CX")
    def fin(t):
        b = AC2 + 4 * t
        a("v_add_f32 v%d, v%d, v%d" % (b, b, b + 1))
        a("v_add_f32 v%d, v%d, v%d" % (b + 2, b + 2, b + 3))
        a("v_add_f32_dpp v%d, v%d, v%d quad_perm:[0,1,2,3] row_mask:0x%x bank_mask:0xf" % (SG + t % 3, b, b + 2, 1 << (t // 3)))
    for t in range(10):
        for ks in range(2):
            a("v_mfma_f32_16x16x32_bf16 %s, %s, %s, %s" % (vr(AC2 + 4 * t), vr(XF + 4 * ks), vr((FR0 if ks == 0 else R0) + 4 * t), vr(AC2 + 4 * t) if ks else "0"))
        if t >= 2: fin(t - 2)
    fin(8); fin(9)
    a("buffer_store_dwordx4 %s, v%d, %s, s19 offen sc1" % (vr(SG), vRS, srd(WS)))
    flag_set(F_YP)
    stamp("S pub")
    a("s_branch L_fin")

    a("L_CY:")
    role("CY", "Y")
    F1R, F2R, FC, FA, FT, FP, DV, FG = 16, 56, 76, 82, 90, 100, 120, 132
    vF1, vF2a, vF2b, vFG = 6, 7, 9, 10
    a("s_lshr_b32 s13, s%d, 2" % sS)
    a("s_lshl_b32 s13, s13, 3")
    a("s_add_u32 s13, s13, s%d" % sX)
    a("s_cmp_ge_u32 s13, 27")
    a("s_cbranch_scc1 L_fin")
    a("s_waitcnt lgkmcnt(0)")
    a("s_cmp_ge_u32 s%d, 2" % sR)
    a("s_cselect_b32 s%d, s22, s%d" % (WF, WF))
    a("s_cselect_b32 s%d, s23, s%d" % (WF + 1, WF + 1))
    a("s_and_b32 s14, s%d, 3" % sS)
    a("s_lshl_b32 s15, s14, 1")
    a("s_and_b32 s16, s%d, 1" % sR)
    a("s_add_u32 s15, s15, s16")
    a("s_mul_i32 s8, s15, %d" % (80 * 3456))
    a("s_lshl_b32 s16, s13, 7")
    a("s_add_u32 s8, s8, s16")
    a("s_lshl_b32 s16, s13, 2")
    a("s_add_u32 s16, s16, s14")
    a("s_mul_i32 s9, s16, %d" % (16 * 1280))
    a("s_lshl_b32 s10, s16, 2")
    a("s_add_u32 s10, s10, s%d" % sR)
    a("s_lshl_b32 s10, s10, 9")
    a("s_add_u32 s10, s10, %d" % W_HF)
    a("s_lshl_b32 s11, s13, 13")
    a("s_lshl_b32 s12, s14, 7")
    a("s_add_u32 s11, s11, s12")
    a("s_add_u32 s11, s11, %d" % W_HF)
    a("s_add_u32 s19, s19, %d" % W_F)
    a("v_lshrrev_b32 v12, 3, v%d" % vL)
    a("v_and_b32 v11, 7, v%d" % vL)
    a("v_mul_u32_u24 v%d, %d, v12" % (vF1, 10 * 3456))
    a("v_lshl_add_u32 v%d, v11, 4, v%d" % (vF1, vF1))
    a("v_mul_u32_u24 v%d, 5120, v%d" % (vF2a, vG))
    a("v_add_u32 v%d, v%d, v8" % (vF2b, vF2a))
    a("v_add_u32 v%d, v%d, v13" % (vF2a, vF2a))
    a("s_mul_i32 s15, s15, 160")
    a("v_mul_u32_u24 v13, 20, v12")
    a("v_add_u32 v13, s15, v13")
    a("s_waitcnt lgkmcnt(0)")
    for k in range(5): a("ds_read_b32 v%d, v13 offset:%d" % (FC + k, XN + 4 * k))
    a("v_lshlrev_b32 v8, 11, v%d" % vG)
    a("v_and_b32 v12, 1, v12")
    a("v_lshl_add_u32 v8, v12, 9, v8")
    a("v_lshl_add_u32 v%d, v11, 4, v8" % vFG)
    a("v_lshlrev_b32 v13, 4, v%d" % vG)
    a("v_lshl_add_u32 v13, v11, 6, v13")
    flag_wait(F_XI, FT, slp=2 * p["SPS"])
    stamp("go")
    fl = []
    for i in range(10):
        fl.append(["buffer_load_dwordx4 %s, v%d, %s, s8 offen offset:%d %s" % (vr(F1R + 4 * i), vF1, srd(WF), 3456 * (i & 1), NT)])
        if i & 1 and i < 9: fl[-1].append("s_add_u32 s8, s8, 6912")
    f2 = []
    for r in range(4):
        f2.append(["buffer_load_dwordx4 %s, v%d, %s, s9 offen offset:%d %s" % (vr(F2R + 4 * r), vF2a, srd(WD), 1280 * r, NT)])
        f2.append(["buffer_load_dword v%d, v%d, %s, s9 offen offset:%d %s" % (F2R + 16 + r, vF2b, srd(WD), 1280 * r, NT)])
    nf2 = min(8, p["FW"])
    gemv_pairs(F1R, FC, FA, FT, 5, fl + f2[:nf2], p["FW"])
    for l in f2[nf2:]: a(l[0])
    scat("32", FA, 4); scat("16", FA, 2)
    ror("v_add_f32", FA, 8); ror("v_add_f32", FA + 1, 8)
    a("v_mov_b32 v%d, 0" % (FA + 2))
    a("v_mov_b32 v%d, s%d" % (FA + 3, sT))
    a("s_mov_b32 exec_lo, 0x00ff00ff")
    a("s_mov_b32 exec_hi, 0x00ff00ff")
    a("buffer_store_dwordx4 %s, v13, %s, s10 offen sc1" % (vr(FA), srd(WS)))
    a("s_mov_b64 exec, -1")
    stamp("F1 pub")
    a("s_waitcnt vmcnt(1)")
    for pr in range(2):
        for d in range(5):
            r0 = F2R + 8 * pr + d if d < 4 else F2R + 16 + 2 * pr
            r1 = F2R + 8 * pr + 4 + d if d < 4 else F2R + 17 + 2 * pr
            perm(FP + 10 * pr + 2 * d, r1, r0, 0); perm(FP + 10 * pr + 2 * d + 1, r1, r0, 1)
    for k in range(12): a("v_mov_b32 v%d, 0" % (DV + k))
    if p["SLF"]: a("s_sleep %d" % p["SLF"])
    GU = 16
    gather(lambda: [a("buffer_load_dwordx4 %s, v%d, %s, s11 offen offset:%d sc1" % (vr(GU + 4 * m), vFG, srd(WS), 1024 * m)) for m in range(2)],
           [GU + 3, GU + 7], slr=4)
    stamp("HF ok")
    for r_ in (GU, GU + 1, GU + 4, GU + 5):
        ror("v_add_f32", r_, 8); swapred("v_add_f32", "16", r_, FT); swapred("v_add_f32", "32", r_, FT)
    for e in range(2):
        g_, u_, t_ = GU + e, GU + 4 + e, FT
        bfr(g_, g_); bfr(u_, u_)
        a("v_mul_f32 v%d, v%d, v%d" % (t_, g_, g_))
        a("v_mul_f32 v%d, %s, v%d" % (t_, f32(0.044715), t_))
        a("v_fma_f32 v%d, v%d, v%d, v%d" % (t_, t_, g_, g_))
        a("v_mul_f32 v%d, %s, v%d" % (t_, f32(-2.0 * math.sqrt(2.0 / math.pi) * LOG2E), t_))
        a("v_exp_f32 v%d, v%d" % (t_, t_))
        a("v_add_f32 v%d, 1.0, v%d" % (t_, t_))
        a("v_rcp_f32 v%d, v%d" % (t_, t_))
        a("v_mul_f32 v%d, v%d, v%d" % (g_, g_, t_))
        bfr(g_, g_)
        a("v_mul_f32 v%d, v%d, v%d" % (g_, g_, u_))
    a("v_cvt_pk_bf16_f32 v%d, v%d, v%d" % (GU, GU, GU + 1))
    a("s_lshl_b32 s14, s%d, 5" % sR)
    a("v_lshl_add_u32 v12, v11, 2, s14")
    a("v_lshl_add_u32 v13, v%d, 3, s14" % vG)
    a("s_mov_b64 exec, 0xff")
    a("ds_write_b32 v12, v%d offset:%d" % (GU, FX))
    a("s_mov_b64 exec, -1")
    a("ds_read_b64 %s, v13 offset:%d" % (vr(GU + 2, 2), FX))
    a("s_waitcnt lgkmcnt(0)")
    for pr in range(2):
        for t in range(10): a("v_dot2c_f32_bf16 v%d, v%d, v%d" % (DV + t, GU + 2 + pr, FP + 10 * pr + t))
    scat("32", DV, 6); scat("16", DV, 3)
    a("v_mov_b32 v%d, s%d" % (DV + 3, sT))
    a("buffer_store_dwordx4 %s, v%d, %s, s19 offen sc1" % (vr(DV), vRS, srd(WS)))
    stamp("F pub")
    a("s_branch L_fin")

    def hintaddr():
        a("s_lshl_b32 s18, s%d, 3" % sS)
        a("s_add_u32 s18, s18, s%d" % sX)
        a("s_lshl_b32 s18, s18, 7")
        a("s_add_u32 s18, s18, %d" % W_HINT)
    a("L_WX:")
    role("WX", "pro")
    UKF, QF, BA, TX = 64, 104, 120, 24
    vQW, vQF, vUF = 8, 5, 10
    a("s_lshl_b32 s10, s%d, 2" % sH)
    a("s_add_u32 s10, s10, s%d" % sR)
    a("s_lshl_b32 s10, s10, 11")
    a("s_add_u32 s11, s10, %d" % W_H1G)
    a("s_add_u32 s10, s10, %d" % (W_H1L if p["LOCAL"] else W_H1G))
    a("s_mov_b32 s12, %d" % p["NLOC"])
    h1loads = lambda: [a("buffer_load_dwordx4 %s, v%d, %s, s10 offen offset:%d sc1" % (vr(H1 + 4 * i), vO16, srd(WS), 1024 * i)) for i in range(2)]
    PRE1 = 2 if p["LOCAL"] and p["PRE1"] else 0
    if PRE1: h1loads()
    kload(OUT); ksrd(OUT); common2(); hintaddr()
    if p["PRIO"]: a("s_setprio %d" % p["PRIO"])
    a("v_lshrrev_b32 v12, 5, v%d" % vL)
    a("s_lshl_b32 s13, s%d, 2" % sR)
    a("v_add_u32 v12, s13, v12")
    a("v_mul_u32_u24 v%d, %d, v12" % (vQW, QPS))
    a("v_and_b32 v12, 31, v%d" % vL)
    a("v_lshl_add_u32 v%d, v12, 3, v%d" % (vQW, vQW))
    a("v_mul_u32_u24 v%d, %d, v%d" % (vQF, QPS, vJ))
    a("v_lshl_add_u32 v%d, v%d, 4, v%d" % (vQF, vG, vQF))
    a("v_xor_b32 v12, v%d, v%d" % (vG, vJ))
    a("v_lshlrev_b32 v12, 4, v12")
    a("v_lshl_add_u32 v12, v%d, 9, v12" % vJ)
    a("v_add_u32 v%d, s9, v12" % vUF)
    a("s_lshr_b32 s13, s%d, 4" % sH)
    a("s_lshl_b32 s13, s13, 2")
    a("s_add_u32 s13, s13, s7")
    a("s_lshl_b32 s13, s13, 4")
    a("s_and_b32 s14, s%d, 15" % sH)
    a("s_add_u32 s13, s13, s14")
    a("s_lshl_b32 s13, s13, 2")
    a("s_add_u32 s13, s13, s%d" % sR)
    a("s_lshl_b32 s13, s13, 7")
    a("s_add_u32 s13, s13, %d" % W_H2)
    a("v_lshlrev_b32 v13, 3, v%d" % vJ)
    GR = TX + 8
    a("v_mov_b32 v%d, 0" % (GR + 2))
    a("s_mov_b32 s14, %s" % f32(LOG2E * 128 ** -0.5))
    get_tag(vEP)
    a("v_mov_b32 v%d, s%d" % (GR + 3, sT))
    flag_wait(F_AP, TX, n=2 if ALL else 4)
    if p["SL1"]: a("s_sleep %d" % p["SL1"])
    stamp("AP")
    def h1fail():
        a("s_sub_u32 s12, s12, 1")
        a("s_cmp_gt_i32 s12, 0")
        a("s_cselect_b32 s10, s10, s11")
    def h1first():
        h1loads()
        a("s_waitcnt vmcnt(2)")
        stamp("uk in")
        for ks in range(4):
            a("v_xor_b32 v12, %d, v%d" % (64 * ks, vUF))
            for t in range(2): a("ds_read_b128 %s, v12 offset:%d" % (vr(UKF + 16 * t + 4 * ks), 256 * t))
        a("s_waitcnt vmcnt(0)")
    gather(h1loads, [H1 + 3, H1 + 7], pre=h1first, onfail=h1fail, slr=1)
    stamp("H1 ok")
    for i in range(2): a("ds_write_b64 v%d, %s offset:%d" % (vQW, vr(H1 + 4 * i, 2), QP + 2 * QPS * i))
    flag_set(F_QP)
    flag_wait(F_QP, TX, ["ds_read_b128 %s, v%d offset:%d" % (vr(QF + 4 * ks), vQF, QP + 64 * ks) for ks in range(4)])
    for ks in range(4):
        for t in range(2):
            a("v_mfma_f32_16x16x32_bf16 %s, %s, %s, %s" % (vr(BA + 4 * t), vr(QF + 4 * ks), vr(UKF + 16 * t + 4 * ks), vr(BA + 4 * t) if ks else "0"))
    for t in range(2):
        b = BA + 4 * t
        a("v_add_f32 v%d, v%d, v%d" % (b, b, b + 1))
        a("v_add_f32 v%d, v%d, v%d" % (b + 2, b + 2, b + 3))
        a("v_add_f32 v%d, v%d, v%d" % (b, b, b + 2))
    a("v_permlane32_swap_b32 v%d, v%d" % (BA, BA + 4))
    a("v_add_f32 v%d, v%d, v%d" % (BA, BA, BA + 4))
    swapred("v_add_f32", "16", BA, BA + 1)
    a("v_mul_f32 v%d, s14, v%d" % (BA, BA))
    a("v_mov_b32 v%d, v%d" % (BA + 1, BA))
    a("v_permlane32_swap_b32 v%d, v%d" % (BA, BA + 1))
    a("v_cvt_pk_bf16_f32 v%d, v%d, v%d" % (GR, BA, BA + 1))
    a("v_mov_b32_dpp v%d, v%d quad_perm:[1,1,3,3] row_mask:0xf bank_mask:0xf" % (GR + 1, GR))
    a("s_mov_b64 exec, 0x5555")
    a("buffer_store_dwordx4 %s, v13, %s, s13 offen sc1" % (vr(GR), srd(WS)))
    flag_set(F_BP)
    stamp("H2 pub")
    GD, GS, PP, CA = 64, 112, 116, 152
    vGa, vGS, vW1, vW2, vW3 = 7, 8, 9, 10, 11
    a("s_lshr_b32 s13, s%d, 1" % sH)
    a("s_lshl_b32 s13, s13, 2")
    a("s_and_b32 s14, s%d, 2" % sS)
    a("s_add_u32 s13, s13, s14")
    a("s_lshr_b32 s14, s%d, 1" % sR)
    a("s_add_u32 s13, s13, s14")
    a("s_mul_i32 s13, s13, %d" % (64 * 768))
    a("s_and_b32 s14, s%d, 1" % sH)
    a("s_lshl_b32 s14, s14, 6")
    a("s_add_u32 s13, s13, s14")
    a("s_add_u32 s13, s13, %d" % W_H3)
    a("s_and_b32 s15, s%d, 1" % sR)
    a("s_mul_i32 s14, s15, 384")
    a("s_add_u32 s14, s14, s13")
    a("v_lshrrev_b32 v12, 2, v%d" % vL)
    a("v_and_b32 v13, 3, v%d" % vL)
    a("v_mul_u32_u24 v%d, 3072, v12" % vGa)
    a("v_lshl_add_u32 v%d, v13, 4, v%d" % (vGa, vGa))
    a("v_mul_u32_u24 v%d, 768, v%d" % (vGS, vL))
    a("s_lshl_b32 s16, s%d, 7" % sR)
    a("v_lshl_add_u32 v%d, v%d, 1, s16" % (vW1, vL))
    a("v_lshl_add_u32 v%d, v12, 3, s16" % vW2)
    a("v_mul_u32_u24 v%d, %d, v12" % (vW3, CBS))
    a("v_mul_u32_u24 v13, 80, v13")
    a("s_lshr_b32 s16, s%d, 1" % sR)
    a("s_mul_i32 s16, s16, 320")
    a("s_mul_i32 s15, s15, 36")
    a("s_add_u32 s16, s16, s15")
    a("s_add_u32 s16, s16, %d" % CB)
    a("v_add3_u32 v%d, v%d, v13, s16" % (vW3, vW3))
    for k in range(18): a("v_mov_b32 v%d, 0" % (CA + k))
    a("s_cmp_lg_u32 s%d, 0" % sR)
    a("s_cbranch_scc1 L_nohint")
    Lh = lab("hint")
    a("s_mov_b64 exec, 1")
    a(Lh + ":")
    a("s_sleep %d" % p["SLH"])
    a("buffer_load_dword v12, v%d, %s, s18 offen sc1" % (vZ, srd(WS)))
    a("s_waitcnt vmcnt(0)")
    a("v_cmp_eq_u32 vcc, s%d, v12" % sT)
    a("s_cbranch_vccnz L_hintok")
    budget(Lh)
    a("L_hintok:")
    flag_set(F_HI)
    a("L_nohint:")
    flag_wait(F_HI, TX, n=1, slp=p["SPS"])
    if p["SL3"]: a("s_sleep %d" % p["SL3"])
    stamp("hint")
    def g3():
        a("buffer_load_dwordx4 %s, v%d, %s, s13 offen offset:640 sc1" % (vr(GS), vGS, srd(WS)))
        for z in range(3):
            for i in range(4):
                a("buffer_load_dwordx4 %s, v%d, %s, s14 offen offset:%d sc1" % (vr(GD + 16 * z + 4 * i), vGa, srd(WS), 768 * i + 128 * z))
    gather(g3, [GS + 3] + [GD + 4 * i + 3 for i in range(12)])
    stamp("H3 ok")
    MM, WT, T5, WP, LL = TX, TX + 1, TX + 2, TX + 4, TX + 6
    perms = []
    for z in range(3):
        for pr in range(2):
            for q in range(3):
                for up in range(2):
                    perms.append((PP + 12 * z + 6 * pr + 2 * q + up, GD + 16 * z + 8 * pr + 4 + q, GD + 16 * z + 8 * pr + q, up))
    pi = iter(perms)
    a("v_mov_b32 v%d, v%d" % (MM, GS + 1))
    for r in (8, 4, 2, 1):
        perm(*next(pi)); perm(*next(pi))
        ror("v_max_f32", MM, r)
    for sw in ("16", "32"):
        a("v_mov_b32 v%d, v%d" % (T5, MM))
        perm(*next(pi)); perm(*next(pi))
        a("v_permlane%s_swap_b32 v%d, v%d" % (sw, T5, MM))
        a("v_max_f32 v%d, v%d, v%d" % (MM, MM, T5))
    a("v_sub_f32 v%d, v%d, v%d" % (WT, GS + 1, MM))
    a("v_exp_f32 v%d, v%d" % (WT, WT))
    perm(*next(pi))
    a("ds_write_b16_d16_hi v%d, v%d offset:%d" % (vW1, WT, WSC))
    a("ds_read_b64 %s, v%d offset:%d" % (vr(WP, 2), vW2, WSC))
    a("v_mul_f32 v%d, v%d, v%d" % (LL, WT, GS + 2))
    for r in (8, 4, 2, 1):
        perm(*next(pi)); perm(*next(pi))
        ror("v_add_f32", LL, r)
    for sw in ("16", "32"):
        a("v_mov_b32 v%d, v%d" % (T5, LL))
        perm(*next(pi)); perm(*next(pi))
        a("v_permlane%s_swap_b32 v%d, v%d" % (sw, T5, LL))
        a("v_add_f32 v%d, v%d, v%d" % (LL, LL, T5))
    for t in pi: perm(*t)
    a("v_rcp_f32 v%d, v%d" % (LL, LL))
    a("s_waitcnt lgkmcnt(0)")
    for z in range(3):
        for pr in range(2):
            for k in range(6): a("v_dot2c_f32_bf16 v%d, v%d, v%d" % (CA + 6 * z + k, WP + pr, PP + 12 * z + 6 * pr + k))
    for k in range(9): a("v_cvt_pk_bf16_f32 v%d, v%d, v%d" % (CA + k, CA + 2 * k, CA + 2 * k + 1))
    for k in range(0, 8, 2): a("ds_write2_b32 v%d, v%d, v%d offset0:%d offset1:%d" % (vW3, CA + k, CA + k + 1, k, k + 1))
    a("ds_write_b32 v%d, v%d offset:32" % (vW3, CA + 8))
    a("s_mov_b64 exec, 1")
    a("ds_write_b32 v%d, v%d offset:%d" % (vZ, LL, LINV))
    flag_set(F_CB)
    stamp("CB")
    a("s_cmp_lg_u32 s%d, 3" % sR)
    a("s_cbranch_scc1 L_fin")
    GF, GSs = 64, 80
    a("s_lshr_b32 s12, s%d, 2" % sS)
    a("s_lshl_b32 s14, s12, 3")
    a("s_add_u32 s14, s14, s%d" % sX)
    a("s_lshl_b32 s14, s14, 2")
    a("s_and_b32 s13, s%d, 3" % sS)
    a("s_add_u32 s14, s14, s13")
    a("s_lshl_b32 s14, s14, 5")
    a("s_lshr_b32 s16, s13, 1")
    a("s_lshl_b32 s17, s%d, 1" % sX)
    a("s_add_u32 s16, s16, s17")
    a("s_and_b32 s17, s%d, 1" % sS)
    a("s_mul_i32 s17, s17, 6")
    a("v_lshlrev_b32 v12, 1, v%d" % vG)
    a("v_mov_b32 v13, 0x98")
    a("v_bfe_u32 v12, v13, v12, 2")
    a("v_and_b32 v13, 1, v%d" % vL)
    a("v_mul_u32_u24 v9, 3, v13")
    a("v_add3_u32 v12, v12, v9, s17")
    a("s_lshl_b32 s18, s12, 7")
    a("s_lshl_b32 s19, s16, 3")
    a("s_add_u32 s18, s18, s19")
    a("s_lshl_b32 s19, s12, 5")
    a("s_lshl_b32 s16, s16, 1")
    a("s_add_u32 s19, s19, s16")
    a("s_add_u32 s19, s19, 504")
    a("v_add_u32 v10, s18, v12")
    a("v_add_u32 v7, s19, v12")
    a("v_cmp_gt_u32 vcc, 8, v12")
    a("v_cndmask_b32 v7, v7, v10, vcc")
    a("v_lshlrev_b32 v7, 1, v7")
    a("v_cmp_gt_u32 vcc, 10, v12")
    a("s_mov_b32 s16, 0x00030003")
    a("s_mov_b32 s17, 0x00000003")
    a("s_and_b64 s[16:17], s[16:17], vcc")
    a("v_mov_b32 v10, 0x10000")
    a("v_cndmask_b32 v7, v10, v7, s[16:17]")
    a("buffer_load_ushort v8, v7, %s, 0 offen" % srd(X))
    a("v_lshrrev_b32 v9, 1, v%d" % vL)
    a("v_lshlrev_b32 v9, 12, v9")
    a("v_lshl_add_u32 v9, v13, 4, v9")
    a("s_add_u32 s4, s14, %d" % W_F)
    a("s_add_u32 s8, s14, %d" % W_S)
    for i in range(1, 4):
        a("s_add_u32 s%d, s4, %d" % (4 + i, i * 32 * 4096))
        a("s_add_u32 s%d, s8, %d" % (8 + i, i * 32 * 4096))
    a("s_mov_b32 s18, 0x003f003f")
    a("s_mov_b32 s19, 0x003f003f")
    for k in range(3): a("v_mov_b32 v%d, 0" % (GF + 12 + k))
    a("v_mov_b32 v%d, s%d" % (GF + 15, sT))
    def red3(B, D, t):
        for k in range(3):
            a("v_add_f32 v%d, v%d, v%d" % (B + k, B + k, B + 4 + k))
            a("v_add_f32 v%d, v%d, v%d" % (B + 8 + k, B + 8 + k, B + 12 + k))
        for k in range(3): a("v_add_f32 v%d, v%d, v%d" % (B + k, B + k, B + 8 + k))
        a("v_mov_b32 v%d, v%d" % (t, B + 2))
        a("v_permlane32_swap_b32 v%d, v%d" % (B, B + 1))
        a("v_permlane32_swap_b32 v%d, v%d" % (t, B + 2))
        a("v_add_f32 v%d, v%d, v%d" % (B, B, B + 1))
        a("v_add_f32 v%d, v%d, v%d" % (t, t, B + 2))
        a("v_permlane16_swap_b32 v%d, v%d" % (B, t))
        a("v_add_f32 v%d, v%d, v%d" % (D, B, t))
        for r in (8, 4, 2): ror("v_add_f32", D, r)
    def gf():
        for i in range(3): a("buffer_load_dwordx4 %s, v9, %s, s%d offen sc1" % (vr(GF + 4 * i), srd(WS), 4 + i))
        a("s_mov_b64 exec, s[18:19]")
        a("buffer_load_dwordx4 %s, v9, %s, s7 offen sc1" % (vr(GF + 12), srd(WS)))
        a("s_mov_b64 exec, -1")
    gather(gf, [GF + 4 * i + 3 for i in range(4)], slr=4)
    stamp("F ok")
    GG, T6 = TX, TX + 1
    red3(GF, GG, T6)
    bfr(GG, GG)
    a("v_mul_f32 v%d, %s, v%d" % (T6, f32(-LOG2E), GG))
    a("v_exp_f32 v%d, v%d" % (T6, T6))
    a("v_add_f32 v%d, 1.0, v%d" % (T6, T6))
    a("v_rcp_f32 v%d, v%d" % (T6, T6))
    a("v_mul_f32 v%d, v%d, v%d" % (GG, GG, T6))
    bfr(GG, GG)
    a("v_lshlrev_b32 v8, 16, v8")
    flag_wait(F_YP, TX + 4)
    if p["SL4"]: a("s_sleep %d" % p["SL4"])
    stamp("g4 iss")
    gather(lambda: [a("buffer_load_dwordx4 %s, v9, %s, s%d offen sc1" % (vr(GSs + 4 * i), srd(WS), 8 + i)) for i in range(4)],
           [GSs + 4 * i + 3 for i in range(4)], slr=1)
    stamp("S ok")
    SS = TX + 2
    red3(GSs, SS, T6)
    bfr(SS, SS)
    a("v_mul_f32 v%d, v%d, v%d" % (SS, SS, GG))
    bfr(SS, SS)
    a("v_add_f32 v%d, v%d, v8" % (SS, SS))
    a("v_cvt_pk_bf16_f32 v%d, v%d, v%d" % (SS, SS, SS))
    a("buffer_store_short v%d, v7, %s, 0 offen %s" % (SS, srd(OUT), p["OUTSC"]))
    a("s_cmp_lg_u32 s2, 0")
    a("s_cbranch_scc1 L_fin")
    a("v_mov_b32 v12, s%d" % sT)
    a("s_mov_b64 exec, 1")
    a("buffer_store_dword v12, v%d, %s, 0 offen offset:%d sc1" % (vZ, srd(WS), W_EP))
    a("s_branch L_fin")

    a("L_CX:")
    role("CX", "pro")
    S0, S1, QB, SA, TX = 64, 128, 192, 16, 24
    vQW, vSF, vQB, vT0, vT1 = 7, 8, 5, 10, 6
    a("s_and_b32 s7, s%d, 1" % sS)
    a("s_lshl_b32 s10, s7, 2")
    a("s_add_u32 s10, s10, s%d" % sR)
    a("s_lshl_b32 s10, s10, 13")
    a("s_add_u32 s10, s10, %d" % W_H2)
    a("s_add_u32 s11, s10, 4096")
    def g2():
        for i in range(8):
            a("buffer_load_dwordx4 %s, v%d, %s, s%d offen offset:%d sc1" % (vr(S1 + 4 * i), vO16, srd(WS), 10 + i // 4, 1024 * (i % 4)))
    for r in range(NR0, 32):
        if r == G0: g2()
        elif p["CKW"]: a("s_waitcnt vmcnt(%d)" % (p["CKW"] + 8))
        a("buffer_load_dwordx4 v%d, %s, s8 offen %s lds" % (vO16, srd(CK), NTC))
        if r < 31:
            a("s_add_u32 m0, m0, %d" % RS)
            a("s_add_u32 s8, s8, 1024")
    common2(); hintaddr()
    if p["PRIO"]: a("s_setprio %d" % p["PRIO"])
    late = G0 > 32
    if G0 == 32: g2()
    if p["CYGO"] == "ISS": flag_set(F_XI)
    stamp("issued")
    a("v_lshrrev_b32 v12, 5, v%d" % vL)
    a("v_mul_u32_u24 v%d, %d, v12" % (vQW, RS))
    a("v_and_b32 v12, 31, v%d" % vL)
    a("v_lshl_add_u32 v%d, v12, 3, v%d" % (vQW, vQW))
    a("s_lshl_b32 s12, s%d, 8" % sR)
    a("v_add_u32 v%d, s12, v%d" % (vQW, vQW))
    a("v_mul_u32_u24 v%d, %d, v%d" % (vQB, RS, vJ))
    a("v_lshl_add_u32 v%d, v%d, 4, v%d" % (vQB, vG, vQB))
    a("v_add_u32 v%d, s9, v%d" % (vSF, vQB))
    a("v_lshrrev_b32 v12, 2, v%d" % vJ)
    a("v_lshl_add_u32 v12, v%d, 2, v12" % vG)
    a("v_mul_u32_u24 v%d, %d, v12" % (vT0, RS))
    a("v_and_b32 v12, 3, v%d" % vL)
    a("v_lshl_add_u32 v%d, v12, 3, v%d" % (vT0, vT0))
    a("s_add_u32 s12, s12, %d" % CKV)
    a("v_add_u32 v%d, s12, v%d" % (vT0, vT0))
    a("v_add_u32 v%d, %d, v%d" % (vT1, 64 * RS, vT0))
    ng = 0 if late else 8
    get_tag(vEP)
    assert G0 >= 16
    a("s_waitcnt vmcnt(%d)" % (16 + ng))
    for ks in range(16): a("ds_read_b128 %s, v%d offset:%d" % (vr(S0 + 4 * ks), vSF, 64 * ks))
    tags2 = [S1 + 4 * i + 3 for i in range(8)]
    if late:
        a("s_waitcnt vmcnt(%d)" % (G0 - 33))
        stamp("g2 iss")
        gather(g2, tags2)
    else:
        stamp("g2 iss")
        gather(g2, tags2, pre=lambda: a("s_waitcnt vmcnt(%d)" % (32 - G0)))
    if p["CYGO"] == "G2": flag_set(F_XI)
    stamp("H2 ok")
    for i in range(8): a("ds_write_b64 v%d, %s offset:%d" % (vQW, vr(S1 + 4 * i, 2), QA + 2 * RS * i))
    flag_set(F_QA)
    def hint(at):
        if p["HINTAT"] == at:
            Ls = lab("nh")
            a("s_cmp_lg_u32 s%d, 0" % sR)
            a("s_cbranch_scc1 " + Ls)
            a("v_mov_b32 v13, s%d" % sT)
            a("s_mov_b64 exec, 1")
            a("buffer_store_dword v13, v%d, %s, s18 offen sc1" % (vZ, srd(WS)))
            a("s_mov_b64 exec, -1")
            a(Ls + ":")
    a("s_waitcnt vmcnt(0)")
    flag_wait(F_QA, TX)
    for ks in range(16): a("ds_read_b128 %s, v%d offset:%d" % (vr(QB + 4 * ks), vQB, QA + 64 * ks))
    stamp("S go")
    hint(3)
    for ks in range(16):
        a("s_waitcnt lgkmcnt(15)")
        a("ds_read_b128 %s, v%d offset:%d" % (vr(S1 + 4 * ks), vSF, 16 * RS + 64 * ks))
        a("v_mfma_f32_16x16x32_bf16 %s, %s, %s, %s" % (vr(SA), vr(S0 + 4 * ks), vr(QB + 4 * ks), vr(SA) if ks else "0"))
    for ks in range(16):
        a("s_waitcnt lgkmcnt(%d)" % (15 - ks))
        a("v_mfma_f32_16x16x32_bf16 %s, %s, %s, %s" % (vr(SA + 4), vr(S1 + 4 * ks), vr(QB + 4 * ks), vr(SA + 4) if ks else "0"))
    stamp("S")
    vMW = 12
    a("s_lshl_b32 s12, s%d, 2" % sR)
    a("v_lshl_add_u32 v%d, v%d, 4, s12" % (vMW, vJ))
    a("v_lshlrev_b32 v13, 4, v%d" % vJ)
    M = TX + 4; Tm = TX + 5
    a("v_max3_f32 v%d, v%d, v%d, v%d" % (M, SA, SA + 1, SA + 2))
    a("v_max3_f32 v%d, v%d, v%d, v%d" % (M, M, SA + 3, SA + 4))
    a("v_max3_f32 v%d, v%d, v%d, v%d" % (M, M, SA + 5, SA + 6))
    a("v_max_f32 v%d, v%d, v%d" % (M, M, SA + 7))
    for sw in ("16", "32"): swapred("v_max_f32", sw, M, Tm)
    a("v_ceil_f32 v%d, v%d" % (M, M))
    a("s_mov_b64 exec, 0xffff")
    a("ds_write_b32 v%d, v%d offset:%d" % (vMW, M, MX))
    flag_set(F_MX)
    flag_wait(F_MX, TX, ["ds_read_b128 %s, v13 offset:%d" % (vr(TX + 8), MX)])
    stamp("max")
    PA = S0
    trs = []
    for ks in range(4):
        for T in range(8):
            for tt in range(2):
                off = ((32 * ks + 16 * tt) % 64) * RS + 32 * T
                trs.append("ds_read_b64_tr_b16 %s, v%d offset:%d" % (vr(PA + 32 * ks + 4 * T + 2 * tt, 2), vT0 if ks < 2 else vT1, off))
    NTR0, NTR1 = p["NTR0"], p["NTR1"]
    for t in trs[:NTR0]: a(t)
    a("v_max3_f32 v%d, v%d, v%d, v%d" % (M, TX + 8, TX + 9, TX + 10))
    a("v_max_f32 v%d, v%d, v%d" % (M, M, TX + 11))
    for k in range(8): a("v_sub_f32 v%d, v%d, v%d" % (SA + k, SA + k, M))
    for k in range(8): a("v_exp_f32 v%d, v%d" % (SA + k, SA + k))
    PW = TX + 8
    for k in range(4): a("v_cvt_pk_bf16_f32 v%d, v%d, v%d" % (PW + k, SA + 2 * k, SA + 2 * k + 1))
    a("s_lshl_b32 s12, s%d, 10" % sR)
    a("v_add_u32 v12, s12, v%d" % vO16)
    a("ds_write_b128 v12, %s offset:%d" % (vr(PW), PX))
    flag_set(F_PX)
    hint(2)
    PAC, PF, GO = 192, 224, 36
    for t in trs[NTR0:NTR1]: a(t)
    flag_wait(F_PX, TX, ["ds_read_b128 %s, v%d offset:%d" % (vr(PF + 4 * k), vO16, PX + 1024 * k) for k in range(4)])
    stamp("P")
    hint(1)
    if p["CYGO"] == "P": flag_set(F_XI)
    LS = GO + 22
    a("v_mov_b32 v%d, 0" % LS)
    a("s_mov_b32 s12, 0x3f803f80")
    issued = NTR1; AHEAD = 12
    for m in range(32):
        ks, T = m // 8, m % 8
        needn = 2 * (m + 1)
        while issued < min(64, needn + AHEAD): a(trs[issued]); issued += 1
        if needn > NTR1: a("s_waitcnt lgkmcnt(%d)" % (issued - needn))
        a("v_mfma_f32_16x16x32_bf16 %s, %s, %s, %s" % (vr(PAC + 4 * T), vr(PA + 32 * ks + 4 * T), vr(PF + 4 * ks), vr(PAC + 4 * T) if ks else "0"))
        if m < 16: a("v_dot2c_f32_bf16 v%d, s12, v%d" % (LS, PF + m))
        if m == 15: stamp("PV16")
        if m in (17, 19): a("v_mov_b32 v%d, v%d" % (TX + 6, LS))
        if m in (18, 20):
            a("v_permlane%s_swap_b32 v%d, v%d" % ("16" if m == 18 else "32", TX + 6, LS))
            a("v_add_f32 v%d, v%d, v%d" % (LS, LS, TX + 6))
        if m == 21:
            a("v_lshrrev_b32 v12, 1, v%d" % vJ)
            a("v_mul_u32_u24 v12, %d, v12" % (4 * 64 * 768))
            a("v_and_b32 v13, 1, v%d" % vL)
        if m == 22:
            a("v_lshl_add_u32 v12, v13, 6, v12")
            a("v_lshl_add_u32 v12, v%d, 4, v12" % vG)
            a("v_mov_b32 v%d, v%d" % (GO + 21, M))
            a("s_lshl_b32 s13, s7, 5")
            a("s_add_u32 s13, s13, s%d" % sR)
            a("s_lshl_b32 s13, s13, 6")
            a("s_add_u32 s13, s13, s%d" % sKB)
            a("s_mul_i32 s13, s13, 768")
            a("s_add_u32 s13, s13, %d" % W_H3)
        if m in (23, 24):
            for n in range(3): a("v_mov_b32 v%d, s%d" % (GO + 4 * (n + 3 * (m - 23)) + 3, sT))
    stamp("PV")
    for k in range(16):
        a("v_cvt_pk_bf16_f32 v%d, v%d, v%d" % (GO + 4 * (k // 3) + k % 3, PAC + 2 * k, PAC + 2 * k + 1))
        if k % 3 == 2 or k == 15:
            a("buffer_store_dwordx4 %s, v12, %s, s13 offen offset:%d sc1" % (vr(GO + 4 * (k // 3)), srd(WS), 128 * (k // 3)))
    hint(0)
    if p["CYGO"] == "PUB": flag_set(F_XI)
    stamp("H3 pub")
    a("L_fin:")
    if p.get("PROBE"):
        pw, pi_, pk, pb = p["PROBE"]
        a("s_cmp_lg_u32 s%d, %d" % (sWV, pw & 7))
        a("s_cbranch_scc1 L_end")
        a("s_cmp_lg_u32 s%d, %d" % (sC, pw >> 3))
        a("s_cbranch_scc1 L_end")
        if pb < 256:
            a("s_cmp_lg_u32 s2, %d" % pb)
            a("s_cbranch_scc1 L_end")
        a("s_memrealtime s[100:101]")
        a("s_waitcnt lgkmcnt(0)")
        a("s_sub_u32 s4, s%d, s76" % (76 + 2 * pi_))
        a("s_mul_i32 s4, s4, %d" % pk)
        a("s_min_u32 s4, s4, 100000")
        a("s_add_u32 s4, s4, 2500")
        a("L_probe:")
        a("s_memrealtime s[6:7]")
        a("s_waitcnt lgkmcnt(0)")
        a("s_sub_u32 s5, s6, s76")
        a("s_cmp_lt_u32 s5, s4")
        a("s_cbranch_scc1 L_probe")
    elif p["STAMP"]:
        a("s_mov_b64 exec, -1")
        a("s_memrealtime s[100:101]")
        a("s_memtime s[4:5]")
        a("s_waitcnt lgkmcnt(0)")
        a("s_sub_u32 s4, s4, s74")
        a("v_mov_b32 v12, 0")
        a("v_writelane_b32 v12, s4, 14")
        for k in range(13): a("v_writelane_b32 v12, s%d, %d" % (76 + 2 * k, k))
        a("v_writelane_b32 v12, s%d, 13" % sBUD)
        a("s_lshl_b32 s4, s2, 3")
        a("s_add_u32 s4, s4, s%d" % sWV)
        a("s_lshl_b32 s4, s4, 6")
        a("s_add_u32 s4, s4, %d" % W_ST)
        a("v_lshlrev_b32 v13, 2, v%d" % vL)
        a("s_mov_b64 exec, 0xffff")
        a("buffer_store_dword v12, v13, %s, s4 offen" % srd(WS))
    a("L_end:")
    return a.finish(), a.nnops

HEAD = open("cdna_kernels/%s.s.ref" % NAME).read().split("; Override launch")[0]
def full(**kw):
    body, nn = gen(**kw)
    s = HEAD
    s += "; One persistent launch: 256 workgroups (one per CU) x 8 waves.\n"
    s += "; @launch grid=(256,1,1) block=(512,1,1) lds=%d\n" % LDS_TOTAL
    s += '.amdgcn_target "amdgcn-amd-amdhsa--gfx950"\n.text\n.globl %s_kernel\n.p2align 8\n.type %s_kernel,@function\n%s_kernel:\n' % (NAME, NAME, NAME)
    s += body + "\n    s_endpgm\nL_code_end:\n"
    s += '''.section .rodata,"a"
.p2align 6
.amdhsa_kernel %s_kernel
  .amdhsa_next_free_vgpr 256
  .amdhsa_next_free_sgpr 102
  .amdhsa_accum_offset 256
  .amdhsa_group_segment_fixed_size 0
  .amdhsa_kernarg_size 104
  .amdhsa_user_sgpr_count 2
  .amdhsa_user_sgpr_kernarg_segment_ptr 1
  .amdhsa_system_sgpr_workgroup_id_x 1
.end_amdhsa_kernel
''' % NAME
    return s
def parse(argv):
    kw = {}; out = "cdna_kernels/%s.s" % NAME
    for arg in argv:
        k, v = arg.split("=", 1)
        if k == "out": out = v
        elif k == "PROBE": kw[k] = tuple(int(z) for z in v.split(",")); kw["STAMP"] = 1
        else: kw[k] = int(v, 0) if v[:1].isdigit() else v
    return kw, out
if __name__ == "__main__":
    kw, out = parse(sys.argv[1:])
    open(out, "w").write(full(**kw))
```
